```python
import torch

def _softmax(x, axis=-1):
    return torch.softmax(x, dim=axis)

def _gelu(x):
    return torch.nn.functional.gelu(x, approximate='tanh')

def _silu(x):
    return torch.nn.functional.silu(x)

def _sigmoid(x):
    return torch.sigmoid(x)

def _layernorm(x, axis=-1, eps=1e-05):
    m = x.mean(dim=axis, keepdim=True)
    v = x.var(dim=axis, keepdim=True, unbiased=False)
    return (x - m) / torch.sqrt(v + eps)

def _scatter_add(tgt, idx, src, axis=0):
    return tgt.clone().index_add_(axis, idx, src)

def _segment_sum(src, seg, n):
    out = torch.zeros((n,) + src.shape[1:], dtype=src.dtype)
    return out.index_add_(0, seg, src)

def _pad(x, pw):
    flat = tuple((v for pair in reversed(pw) for v in pair))
    return torch.nn.functional.pad(x, flat)
kernel_name = 'adaLN_cond__ssm_conv_s4__glu_gated_reglu__prompt'

def setup_inputs():

    _w = lambda a: (lambda t: t.to(torch.bfloat16) if t.is_floating_point() else t)(torch.as_tensor(a))

    def _A_setup():
        B, L, D, N = (1, 2048, 576, 128)
        A_re = -(lambda _x: torch.exp(torch.as_tensor(_x)))((lambda *s: torch.randn(*s, dtype=torch.bfloat16) * 3.2)(D, N))
        A_im = torch.pi * (lambda *s: torch.randn(*s, dtype=torch.bfloat16) * 0.05)(D, N)
        B_re = (lambda *s: torch.randn(*s, dtype=torch.bfloat16) * 0.1)(D, N)
        B_im = (lambda *s: torch.randn(*s, dtype=torch.bfloat16) * 0.1)(D, N)
        C_re = (lambda *s: torch.randn(*s, dtype=torch.bfloat16) * 0.1)(D, N)
        C_im = (lambda *s: torch.randn(*s, dtype=torch.bfloat16) * 0.1)(D, N)
        log_dt = (lambda *s: torch.randn(*s, dtype=torch.bfloat16) * 0.05)(D) * 0.5 - 4.0
        Dskip = (lambda *s: torch.randn(*s, dtype=torch.bfloat16) * 0.05)(D)
        return {'u': _w((lambda *s: torch.randn(*s, dtype=torch.bfloat16) * 0.05)(B, L, D)), 'A_re': _w(A_re), 'A_im': _w(A_im), 'B_re': _w(B_re), 'B_im': _w(B_im), 'C_re': _w(C_re), 'C_im': _w(C_im), 'log_dt': _w(log_dt), 'Dskip': _w(Dskip)}
    _A_in = _A_setup()

    def _B_setup():
        B, S, D, F = (1, 2048, 576, 4608)
        return {'x': _w((lambda *s: torch.randn(*s, dtype=torch.bfloat16) * 0.05)(B, S, D)), 'W_gate': _w((lambda *s: torch.randn(*s, dtype=torch.bfloat16) * 0.8)(D, F) * (2.0 / D) ** 0.5), 'W_up': _w((lambda *s: torch.randn(*s, dtype=torch.bfloat16) * 0.8)(D, F) * (2.0 / D) ** 0.5), 'W_down': _w((lambda *s: torch.randn(*s, dtype=torch.bfloat16) * 0.8)(F, D) * (1.0 / F) ** 0.5)}
    _B_in = _B_setup()
    return {'A_u': _A_in['u'], 'A_A_re': _A_in['A_re'], 'A_A_im': _A_in['A_im'], 'A_B_re': _A_in['B_re'], 'A_B_im': _A_in['B_im'], 'A_C_re': _A_in['C_re'], 'A_C_im': _A_in['C_im'], 'A_log_dt': _A_in['log_dt'], 'A_Dskip': _A_in['Dskip'], 'B_x': _B_in['x'], 'B_W_gate': _B_in['W_gate'], 'B_W_up': _B_in['W_up'], 'B_W_down': _B_in['W_down'], 'c': _w((lambda *s: torch.randn(*s, dtype=torch.bfloat16) * 0.2)(1, 576) * 8.0), 'w_mod': _w((lambda *s: torch.randn(*s, dtype=torch.bfloat16) * 0.2)(576, 6 * 576) * 576 ** (-0.5) * 8.0)}

def reference(A_u, A_A_re, A_A_im, A_B_re, A_B_im, A_C_re, A_C_im, A_log_dt, A_Dskip, B_x, B_W_gate, B_W_up, B_W_down, c, w_mod):

    def _A_ref(u, A_re, A_im, B_re, B_im, C_re, C_im, log_dt, Dskip):
        Bsz, L, D = u.shape
        dt = torch.exp(log_dt)[:, None]
        A = A_re + 1j * A_im
        Bc = B_re + 1j * B_im
        Cc = C_re + 1j * C_im
        logdA = dt * A
        dB = dt * Bc
        l = (lambda x, dt: x.to(dt))(torch.arange(L), A_re.dtype)
        P = torch.exp(logdA[:, :, None] * l[None, None, :])
        K = torch.einsum('dn,dnl,dn->dl', Cc, P, dB).real
        L2 = 2 * L
        Kp = _pad(K, ((0, 0), (0, L)))
        up = (lambda x, *d: x.permute(*d))(u, 0, 2, 1)
        up = _pad(up, ((0, 0), (0, 0), (0, L)))
        Kf = (lambda x, axes=(-2, -1): torch.fft.rfft2(x.float(), dim=axes))(Kp[:, None, :], axes=(-2, -1))
        Uf = (lambda x, axes=(-2, -1): torch.fft.rfft2(x.float(), dim=axes))(up[:, :, None, :], axes=(-2, -1))
        Yf = Uf * Kf[None, :, :, :]
        y = (lambda x, s, axes=(-2, -1): torch.fft.irfft2(x, s=s, dim=axes).to(torch.bfloat16))(Yf, (1, L2), axes=(-2, -1))[:, :, 0, :L]
        y = (lambda x, *d: x.permute(*d))(y, 0, 2, 1) + u * Dskip[None, None, :]
        return y

    def _B_ref(x, W_gate, W_up, W_down):
        gate = torch.einsum('bsd,df->bsf', x, W_gate)
        up = torch.einsum('bsd,df->bsf', x, W_up)
        gate = gate * (lambda x, dt: x.to(dt))(gate > 0, gate.dtype)
        h = gate * up
        return torch.einsum('bsf,fd->bsd', h, W_down)
    x = A_u
    mod = (_silu(c) @ w_mod).reshape(c.shape[0], 6, 1, -1)
    sa, ca, ga, sb, cb, gb = (mod[:, 0].clone(), mod[:, 1].clone(), mod[:, 2].clone(), mod[:, 3].clone(), mod[:, 4].clone(), mod[:, 5].clone())
    h = _layernorm(x, axis=-1) * (1 + ca) + sa
    x = x + ga * _A_ref(h, A_A_re, A_A_im, A_B_re, A_B_im, A_C_re, A_C_im, A_log_dt, A_Dskip)
    h = _layernorm(x, axis=-1) * (1 + cb) + sb
    x = x + gb * _B_ref(h, B_W_gate, B_W_up, B_W_down)
    return x
```

```python
import re

TRANS = ('v_exp_f32', 'v_log_f32', 'v_rcp_f32', 'v_rsq_f32', 'v_sqrt_f32', 'v_sin_f32', 'v_cos_f32', 'v_rcp_iflag_f32')

def _regs(tok):
    tok = tok.strip()
    tok = tok.lstrip('-')
    m = re.fullmatch(r'(?:abs|neg)\((.*)\)', tok)
    if m: tok = m.group(1)
    tok = tok.strip('|')
    m = re.fullmatch(r'([vas])(\d+)', tok)
    if m: return {(m.group(1), int(m.group(2)))}
    m = re.fullmatch(r'([vas])\[(\d+):(\d+)\]', tok)
    if m: return {(m.group(1), i) for i in range(int(m.group(2)), int(m.group(3)) + 1)}
    if tok == 'vcc': return {('s', 106), ('s', 107)}
    if tok == 'vcc_lo': return {('s', 106)}
    if tok == 'vcc_hi': return {('s', 107)}
    if tok == 'exec': return {('s', 126), ('s', 127)}
    if tok == 'exec_lo': return {('s', 126)}
    if tok == 'exec_hi': return {('s', 127)}
    if tok == 'm0': return {('s', 124)}
    return set()

class Ins:
    def __init__(self, text):
        self.text = text
        t = text.split(';')[0].strip()
        self.is_label = t.endswith(':')
        self.is_dir = t.startswith('.') and not self.is_label
        self.op = ''
        self.dst = set(); self.src = set(); self.srcc = set(); self.srcab = set(); self.data = set()
        self.kind = 'other'
        if self.is_label or self.is_dir or not t:
            self.kind = 'meta'; return
        parts = t.split(None, 1)
        op = parts[0]; self.op = op
        rest = parts[1] if len(parts) > 1 else ''
        ops = []; cur = ''; depth = 0
        for ch in rest:
            if ch in '[(': depth += 1
            if ch in '])': depth -= 1
            if ch == ',' and depth == 0:
                ops.append(cur); cur = ''
            else: cur += ch
        if cur.strip(): ops.append(cur)
        ops = [o.strip() for o in ops]
        mods = ''
        if ops:
            sp = ops[-1].split(None, 1)
            ops[-1] = sp[0]; mods = sp[1] if len(sp) > 1 else ''
        self.mods = mods
        self.ops = ops
        base = re.sub(r'_(e32|e64|dpp|sdwa)$', '', op)
        self.base = base
        R = [_regs(o) for o in ops]
        if op.startswith('v_mfma'):
            self.kind = 'mfma'
            self.passes = 8 if '32x32' in op else 4
            self.dst = R[0]; self.srcab = R[1] | R[2]; self.srcc = R[3]; self.src = self.srcab | self.srcc
        elif op.startswith('v_'):
            self.kind = 'valu'
            self.trans = base in TRANS
            self.dpp = op.endswith('_dpp') or any(k in mods for k in ('quad_perm', 'row_shr', 'row_shl', 'row_ror', 'wave_sh', 'row_bcast', 'row_mirror', 'row_half_mirror', 'wave_ro', 'row_newbcast'))
            self.perml = base.startswith('v_permlane')
            self.rdlane = base in ('v_readlane_b32', 'v_readfirstlane_b32')
            if base.startswith('v_cmp'):
                self.dst = R[0]; self.src = set().union(*R[1:])
                if base.startswith('v_cmpx'): self.dst |= _regs('exec')
            elif base in ('v_add_co_u32', 'v_sub_co_u32', 'v_subrev_co_u32', 'v_addc_co_u32', 'v_subb_co_u32', 'v_mad_u64_u32', 'v_div_scale_f32'):
                self.dst = R[0] | R[1]; self.src = set().union(*R[2:])
            elif (self.perml and 'swap' in base) or base == 'v_swap_b32':
                self.dst = R[0] | R[1]; self.src = R[0] | R[1]
            else:
                self.dst = R[0] if R else set(); self.src = set().union(*R[1:]) if len(R) > 1 else set()
                if base in ('v_fmac_f32', 'v_pk_fmac_f16', 'v_dot2c_f32_bf16', 'v_writelane_b32') or self.dpp:
                    self.src |= R[0]
        elif op.startswith('ds_'):
            self.kind = 'ds'
            if 'read' in op or 'permute' in op or 'swizzle' in op:
                self.dst = R[0]; self.src = set().union(*R[1:])
                if 'd16' in op: self.src |= R[0]
            else:
                self.src = set().union(*R)
        elif op.startswith(('buffer_', 'global_')):
            self.kind = 'vmem'
            self.lds = (' lds' in (' ' + mods)) or 'load_lds' in op
            if op in ('buffer_wbl2', 'buffer_inv'):
                pass
            elif 'load' in op and not self.lds:
                self.dst = R[0]; self.src = set().union(*R[1:])
                if 'd16' in op: self.src |= R[0]
            else:
                self.src = set().union(*R)
                if 'store' in op and ('x3' in op or 'x4' in op):
                    self.data = R[0] if op.startswith('buffer_') else R[1]
                if 'atomic' in op and 'sc0' in mods:
                    self.dst = R[0]
        elif op.startswith('s_'):
            self.kind = 'salu'
            if op in ('s_nop',):
                self.kind = 'nop'; self.n = int(ops[0], 0) + 1
            elif op.startswith(('s_cmp', 's_cbranch', 's_branch', 's_waitcnt', 's_barrier', 's_endpgm', 's_setprio', 's_sleep', 's_bitcmp')):
                self.src = set().union(*R) if R else set()
            else:
                self.dst = R[0] if R else set(); self.src = set().union(*R[1:]) if len(R) > 1 else set()
                if 'saveexec' in op: self.dst |= _regs('exec')
    def states(self):
        if self.kind == 'meta': return 0
        if self.kind == 'nop': return self.n
        return 1

def vset(s): return {r for r in s if r[0] in 'va'}
def sset(s): return {r for r in s if r[0] == 's'}

def need(p, c):
    n = 0
    if p.kind == 'valu':
        vd = vset(p.dst); sd = sset(p.dst)
        if c.kind == 'mfma':
            if vd & c.src: n = max(n, 2)
            if sd & _regs('exec'): n = max(n, 4)
        if c.kind == 'valu':
            if p.trans and (vd & c.src) and not c.trans: n = max(n, 1)
            if p.trans and (vd & c.src): n = max(n, 1)
            if c.dpp and (vd & c.src): n = max(n, 2)
            if c.dpp and (sd & _regs('exec')): n = max(n, 5)
            if c.perml and (vd & c.src): n = max(n, 2)
            if c.rdlane and (vd & c.src): n = max(n, 1)
            if sd & sset(c.src): n = max(n, 4 if c.base in ('v_readlane_b32', 'v_writelane_b32', 'v_div_fmas_f32') else 2)
            if ('sdwa' in p.op or 'op_sel:' in p.mods) and not p.base.startswith('v_pk_') and (vd & (c.src | c.dst)): n = max(n, 1)
        if c.kind == 'vmem' and (sd & sset(c.src)): n = max(n, 5)
        if c.kind in ('vmem', 'ds') and p.trans and (vd & c.src): n = max(n, 1)
        if c.kind == 'salu' and (sd & sset(c.src)): n = max(n, 1)
    if p.kind == 'mfma':
        big = p.passes == 8
        if c.kind == 'mfma':
            if p.dst & c.srcab: n = max(n, 12 if big else 8)
            if p.dst & c.srcc:
                if not (p.dst == c.srcc and p.passes == c.passes): n = max(n, 10 if big else 6)
            elif p.dst & c.dst: n = max(n, 10 if big else 6)
        elif c.kind in ('valu', 'ds', 'vmem'):
            if p.dst & (c.src | c.dst): n = max(n, 12 if big else 8)
            if p.srcc & c.dst: n = max(n, 7 if big else 3)
    if p.kind == 'salu':
        if (p.dst & _regs('m0')) and c.kind == 'vmem' and getattr(c, 'lds', False): n = max(n, 1)
    if p.kind == 'vmem' and p.data:
        if p.data & c.dst: n = max(n, 2)
    if p.kind == 'ds' and p.op in ('ds_write_b128', 'ds_write_b96', 'ds_write2_b64') and c.kind == 'valu':
        if vset(p.src) & c.dst: n = max(n, 1)
    return n

def pad_hazards(lines):
    ins = [Ins(l) for l in lines]
    out = []
    npad = 0
    for c in ins:
        if c.kind not in ('meta', 'nop'):
            dist = 0; req = 0
            for p in reversed(out):
                if dist >= 20: break
                if p.kind == 'meta':
                    if p.text.strip().startswith('.text'): break
                    continue
                if p.op in ('s_endpgm', 's_branch'): break
                r = need(p, c) - dist
                req = max(req, r)
                dist += p.states()
            if req > 0:
                out.append(Ins(f'    s_nop {req-1}')); npad += 1
        out.append(c)
    labels = {i.text.strip()[:-1]: k for k, i in enumerate(out) if i.is_label}
    for k, b in enumerate(out):
        if b.op.startswith(('s_cbranch', 's_branch')):
            tgt = b.ops[0]
            if tgt not in labels: continue
            prods = []; dist = 0
            for p in reversed(out[:k+1]):
                if p.kind == 'meta': continue
                prods.append((p, dist)); dist += p.states()
                if dist >= 20: break
            d2 = 0
            for c in out[labels[tgt]:]:
                if c.kind == 'meta': continue
                if d2 >= 20: break
                if c.kind != 'nop':
                    for (p, d1) in prods:
                        if need(p, c) > d1 + d2:
                            raise Exception(f'hazard across branch {b.text.strip()}: {p.text.strip()} -> {c.text.strip()} need {need(p,c)} have {d1+d2}')
                if c.op in ('s_endpgm', 's_branch'): break
                d2 += c.states()
    return [i.text for i in out], npad

class Asm:
    def __init__(self):
        self.lines = []
        self.launches = []
        self.kds = []
        self.uid = 0
    def __call__(self, s, *a):
        for ln in s.strip('\n').split('\n'):
            t = ln.strip()
            if not t: continue
            self.lines.append(t if t.endswith(':') else '    ' + t)
    def label(self, base='L'):
        self.uid += 1
        return f'{base}_{self.uid}'
    def kernel(self, name):
        self.lines += ['.text', f'.globl {name}', '.p2align 8', f'.type {name},@function', f'{name}:']
    def end_kernel(self, name, vgpr, sgpr=96, accum=None, wgy=False):
        if accum is None:
            accum = min(256, (vgpr + 3) // 4 * 4)
        self.kds.append(f'''.amdhsa_kernel {name}
  .amdhsa_next_free_vgpr {vgpr}
  .amdhsa_next_free_sgpr {sgpr}
  .amdhsa_accum_offset {accum}
  .amdhsa_group_segment_fixed_size 0
  .amdhsa_kernarg_size 144
  .amdhsa_user_sgpr_count 2
  .amdhsa_user_sgpr_kernarg_segment_ptr 1
  .amdhsa_system_sgpr_workgroup_id_x 1
''' + ('  .amdhsa_system_sgpr_workgroup_id_y 1\n' if wgy else '') + '''  .amdhsa_float_denorm_mode_32 3
  .amdhsa_float_denorm_mode_16_64 3
.end_amdhsa_kernel''')
    def launch(self, name, grid, block, lds=0):
        g = grid if isinstance(grid, tuple) else (grid, 1, 1)
        self.launches.append(f'; @launch kernel={name} grid=({g[0]},{g[1]},{g[2]}) block=({block},1,1) lds={lds}')
    def text(self, header='', pad=True):
        lines = self.lines
        if pad:
            lines, npad = pad_hazards(lines)
            self.npad = npad
        out = header + '\n'.join(self.launches) + '\n.amdgcn_target "amdgcn-amd-amdhsa--gfx950"\n'
        out += '\n'.join(lines) + '\n'
        out += '.section .rodata,"a"\n'
        for kd in self.kds:
            out += '.p2align 6\n' + kd + '\n'
        return out
    def srd(self, d, b, nbytes, off=0):
        if off:
            self(f's_add_u32 s{d}, s{b}, {off}\ns_addc_u32 s{d+1}, s{b+1}, 0')
        else:
            if d != b: self(f's_mov_b32 s{d}, s{b}\ns_mov_b32 s{d+1}, s{b+1}')
        self(f's_mov_b32 s{d+2}, {nbytes}\ns_mov_b32 s{d+3}, 0x00020000')
```

```python
import sys, math, struct
from ag import Asm

def f2u(x): return struct.unpack('<I', struct.pack('<f', x))[0]
LOG2E = f2u(1.4426950408889634)
INV2PI = f2u(0.15915494309189535)

MOD_OFF = 0
KT_OFF = 0x4000
XT_OFF = 0x100000
X1T_OFF = 0x600000
H2F_OFF = 0x900000
ACT_OFF = 0xC00000
WS_BYTES = 268435456

N_KGEN, N_LN, N_MOD = 144, 128, 108

def vr(b, n): return f'v[{b}:{b+n-1}]' if n > 1 else f'v{b}'

def bf16_round(a, dst, src):
    a(f'v_cvt_pk_bf16_f32 v{dst}, v{src}, v{src}')
    a(f'v_lshlrev_b32 v{dst}, 16, v{dst}')

def gen_k1(a):
    name = 'k1_kernel'
    a.launch(name, N_KGEN + N_LN + N_MOD, 256, lds=4*16*528)
    a.kernel(name)
    a('s_load_dwordx2 s[6:7], s[0:1], 136')
    a(f's_cmp_lt_u32 s2, {N_KGEN}\ns_cbranch_scc1 K1_KGEN')
    a(f's_cmp_lt_u32 s2, {N_KGEN+N_LN}\ns_cbranch_scc1 K1_LN')
    a(f's_cmp_lt_u32 s2, {N_KGEN+N_LN+N_MOD}\ns_cbranch_scc1 K1_MOD')
    a('s_endpgm')
    a('K1_MOD:')
    a('s_load_dwordx4 s[8:11], s[0:1], 104')
    a(f's_sub_u32 s3, s2, {N_KGEN+N_LN}')
    a('v_lshrrev_b32 v1, 6, v0\nv_mul_u32_u24 v1, 144, v1\nv_bfe_u32 v2, v0, 2, 4\nv_add_u32 v1, v1, v2')
    a('v_lshlrev_b32 v3, 1, v1')
    a('v_mul_u32_u24 v1, 6912, v1\nv_and_b32 v2, 3, v0\nv_lshlrev_b32 v2, 4, v2\nv_add_u32 v1, v1, v2')
    a('s_lshl_b32 s4, s3, 6')
    a('s_waitcnt lgkmcnt(0)')
    a.srd(12, 10, 576*6912)
    for i in range(9):
        a(f'global_load_ushort v{8+i}, v3, s[8:9] offset:{32*i}')
    for i in range(9):
        a(f'buffer_load_dwordx4 {vr(20+4*i,4)}, v1, s[12:15], s4 offen')
        if i < 8: a(f's_add_u32 s4, s4, {16*6912}')
    a(f's_mov_b32 s16, {f2u(-1.4426950408889634)}')
    a('s_mov_b32 s17, 0xffff0000')
    a('s_waitcnt vmcnt(9)')
    for i in range(9):
        a(f'v_lshlrev_b32 v{8+i}, 16, v{8+i}')
    for i in range(9):
        a(f'v_mul_f32 v{60+i}, s16, v{8+i}')
    for i in range(9):
        a(f'v_exp_f32 v{60+i}, v{60+i}')
    for i in range(9):
        a(f'v_add_f32 v{60+i}, 1.0, v{60+i}')
    for i in range(9):
        a(f'v_rcp_f32 v{60+i}, v{60+i}')
    for i in range(9):
        a(f'v_mul_f32 v{8+i}, v{8+i}, v{60+i}')
    for i in range(9):
        bf16_round(a, 8+i, 8+i)
    for i in range(9):
        a(f's_waitcnt vmcnt({8-i})')
        for j in range(4):
            w = 20+4*i+j
            a(f'v_lshlrev_b32 v60, 16, v{w}\nv_and_b32 v61, s17, v{w}')
            if i == 0:
                a(f'v_mul_f32 v{70+2*j}, v60, v{8+i}\nv_mul_f32 v{71+2*j}, v61, v{8+i}')
            else:
                a(f'v_fmac_f32 v{70+2*j}, v60, v{8+i}\nv_fmac_f32 v{71+2*j}, v61, v{8+i}')
    for sh in (4, 8):
        for j in range(8):
            a(f'v_add_f32_dpp v{70+j}, v{70+j}, v{70+j} row_ror:{sh} row_mask:0xf bank_mask:0xf')
    a('v_lshrrev_b32 v1, 4, v0\nv_lshlrev_b32 v1, 7, v1\nv_and_b32 v2, 3, v0\nv_lshlrev_b32 v2, 5, v2\nv_add_u32 v1, v1, v2')
    a('ds_write_b128 v1, v[70:73]\nds_write_b128 v1, v[74:77] offset:16')
    a('s_waitcnt lgkmcnt(0)\ns_barrier')
    a('v_cmp_gt_u32 vcc, 32, v0\ns_and_saveexec_b64 s[18:19], vcc\ns_cbranch_execz K1_END')
    a('v_lshlrev_b32 v1, 2, v0')
    for i in range(8):
        a(f'ds_read2_b32 {vr(20+2*i,2)}, v1 offset0:{64*i} offset1:{64*i+32}' if 64*i+32 < 256 else f'ds_read2st64_b32 {vr(20+2*i,2)}, v1 offset0:{i} offset1:{i}')
    a.lines = a.lines[:-8]
    for i in range(16):
        a(f'ds_read_b32 v{20+i}, v1 offset:{128*i}')
    a('s_waitcnt lgkmcnt(0)')
    for st in (8, 4, 2, 1):
        for i in range(st):
            a(f'v_add_f32 v{20+i}, v{20+i}, v{20+i+st}')
    bf16_round(a, 20, 20)
    a('s_cmp_ge_u32 s3, 54\ns_cselect_b32 s4, 54, 0\ns_sub_u32 s4, s3, s4\ns_sub_u32 s4, s4, 18\ns_cmp_lt_u32 s4, 18\ns_cselect_b32 s4, 1.0, 0')
    a('v_add_f32 v20, s4, v20')
    bf16_round(a, 20, 20)
    a('s_lshl_b32 s4, s3, 7\nv_add_u32 v1, s4, v1')
    a(f'global_store_dword v1, v20, s[6:7] offset:{MOD_OFF}')
    a('K1_END:\ns_endpgm')

    a('K1_LN:')
    a('s_load_dwordx2 s[8:9], s[0:1], 0')
    a(f's_sub_u32 s3, s2, {N_KGEN}')
    a('v_lshrrev_b32 v1, 4, v0\nv_mul_u32_u24 v1, 1152, v1\nv_and_b32 v2, 15, v0\nv_lshlrev_b32 v3, 3, v2\nv_add_u32 v1, v1, v3')
    a(f's_mul_i32 s4, s3, {16*1152}\nv_add_u32 v1, s4, v1')
    a('s_waitcnt lgkmcnt(0)')
    for i in range(9):
        a(f'global_load_dwordx2 {vr(8+2*i,2)}, v1, s[8:9] offset:{128*i}')
    a('v_lshlrev_b32 v2, 8, v2\nv_bfe_u32 v3, v0, 4, 2\nv_lshlrev_b32 v3, 6, v3\nv_add_u32 v2, v2, v3\nv_lshrrev_b32 v3, 6, v0\nv_lshlrev_b32 v3, 4, v3\nv_add_u32 v2, v2, v3')
    a.srd(12, 6, 2048*576*4, off=XT_OFF)
    a(f's_mul_i32 s5, s3, 36864')
    a('s_mov_b32 s17, 0xffff0000')
    X = 28
    for i in range(9):
        a(f's_waitcnt vmcnt({8-i})')
        for h in range(2):
            w = 8+2*i+h
            a(f'v_lshlrev_b32 v{X+4*i+2*h}, 16, v{w}\nv_and_b32 v{X+4*i+2*h+1}, s17, v{w}')
        if i == 0:
            a(f'v_pk_add_f32 v[4:5], {vr(X,2)}, {vr(X+2,2)}')
        else:
            a(f'v_pk_add_f32 v[4:5], v[4:5], {vr(X+4*i,2)}\nv_pk_add_f32 v[4:5], v[4:5], {vr(X+4*i+2,2)}')
    a('v_add_f32 v4, v4, v5')
    for sh in (8, 4, 2, 1):
        a(f'v_add_f32_dpp v4, v4, v4 row_ror:{sh} row_mask:0xf bank_mask:0xf')
    a(f'v_mul_f32 v4, {f2u(1/576)}, v4')
    D = 64
    for i in range(18):
        a(f'v_pk_add_f32 {vr(D+2*i,2)}, {vr(X+2*i,2)}, v[4:5] op_sel_hi:[1,0] neg_lo:[0,1] neg_hi:[0,1]')
        if i == 0: a(f'v_pk_mul_f32 v[6:7], {vr(D,2)}, {vr(D,2)}')
        else: a(f'v_pk_fma_f32 v[6:7], {vr(D+2*i,2)}, {vr(D+2*i,2)}, v[6:7]')
    a('v_add_f32 v6, v6, v7')
    for sh in (8, 4, 2, 1):
        a(f'v_add_f32_dpp v6, v6, v6 row_ror:{sh} row_mask:0xf bank_mask:0xf')
    a(f'v_mul_f32 v6, {f2u(1/576)}, v6')
    bf16_round(a, 6, 6)
    a(f'v_add_f32 v6, {f2u(1e-5)}, v6')
    bf16_round(a, 6, 6)
    a('v_sqrt_f32 v6, v6')
    bf16_round(a, 6, 6)
    a('v_rcp_f32 v6, v6')
    bf16_round(a, 5, 4)
    a('v_sub_f32 v4, v4, v5\nv_mul_f32 v4, v4, v6')
    for i in range(9):
        for h in range(2):
            k = 2*i+h
            a(f'v_pk_fma_f32 {vr(D+2*k,2)}, {vr(D+2*k,2)}, v[6:7], v[4:5] op_sel_hi:[1,0,0]')
        for j in range(4):
            a(f'v_cvt_pk_bf16_f32 v{X+4*i+j}, v{X+4*i+j}, v{D+4*i+j}')
    for i in range(9):
        b = X+4*i
        a(f'v_permlane32_swap_b32 v{b}, v{b+2}\nv_permlane32_swap_b32 v{b+1}, v{b+3}')
    for i in range(9):
        b = X+4*i
        a(f'v_permlane16_swap_b32 v{b}, v{b+1}\nv_permlane16_swap_b32 v{b+2}, v{b+3}')
        a(f'buffer_store_dwordx4 {vr(b,4)}, v2, s[12:15], s5 offen')
        if i < 8: a('s_add_u32 s5, s5, 4096')
    a('s_endpgm')

    a('K1_KGEN:')
    a('s_load_dwordx16 s[8:23], s[0:1], 8')
    a('s_lshl_b32 s3, s2, 10\nv_lshlrev_b32 v1, 2, v0\nv_add_u32 v1, s3, v1')
    a('v_lshrrev_b32 v3, 6, v0\ns_lshl_b32 s3, s2, 2\nv_add_u32 v3, s3, v3')
    a('v_lshlrev_b32 v2, 1, v3')
    a('s_waitcnt lgkmcnt(0)')
    a('global_load_ushort v14, v2, s[20:21]\nglobal_load_ushort v15, v2, s[22:23]')
    for i in range(6):
        a(f'global_load_dword v{8+i}, v1, s[{8+2*i}:{9+2*i}]')
    a('v_lshrrev_b32 v6, 6, v0\nv_mul_u32_u24 v6, 8448, v6\nv_and_b32 v4, 63, v0\nv_lshl_add_u32 v4, v4, 3, v6')
    a('v_and_b32 v7, 15, v0\nv_mul_u32_u24 v5, 528, v7\nv_add_u32 v5, v5, v6\nv_bfe_u32 v6, v0, 4, 2\nv_lshl_add_u32 v5, v6, 4, v5')
    a('v_mul_u32_u24 v3, 1536, v3')
    a('v_lshrrev_b32 v100, 1, v6\nv_lshlrev_b32 v100, 8, v100\nv_and_b32 v101, 1, v6\nv_lshl_add_u32 v100, v101, 3, v100\nv_lshl_add_u32 v100, v7, 4, v100\nv_add_u32 v100, v100, v3')
    a('v_lshrrev_b32 v101, 1, v6\nv_sub_u32 v102, 3, v101\nv_lshlrev_b32 v102, v102, v7\nv_lshl_add_u32 v102, v6, 7, v102\nv_add_u32 v102, v102, v3')
    a('v_mul_u32_u24 v101, 60, v101\nv_add_u32 v101, v101, v102')
    a('v_lshlrev_b32 v103, 5, v7\nv_lshl_add_u32 v103, v6, 3, v103\nv_add_u32 v103, v103, v3')
    a('s_mov_b32 s24, 0xffff0000')
    a(f's_mov_b32 s25, {LOG2E}\ns_mov_b32 s26, {INV2PI}')
    a('s_waitcnt vmcnt(6)')
    a('v_lshlrev_b32 v14, 16, v14\nv_mul_f32 v14, s25, v14\nv_exp_f32 v14, v14')
    bf16_round(a, 14, 14)
    a('v_lshlrev_b32 v15, 16, v15\nv_and_b32 v16, 63, v0\nv_cmp_eq_u32 vcc, 0, v16\nv_cndmask_b32 v88, 0, v15, vcc\nv_mov_b32 v89, 0\nv_mov_b32 v90, 0\nv_mov_b32 v91, 0')
    a('v_mul_f32 v16, s25, v14\nv_mul_f32 v17, s26, v14')
    a('s_waitcnt vmcnt(0)')
    for i in range(6):
        a(f'v_lshlrev_b32 v{18+2*i}, 16, v{8+i}\nv_and_b32 v{19+2*i}, s24, v{8+i}')
    a('v_pk_mul_f32 v[18:19], v[18:19], v[16:17] op_sel_hi:[1,0]')
    a('v_pk_mul_f32 v[20:21], v[20:21], v[16:17] op_sel:[0,1] op_sel_hi:[1,1]')
    a('v_pk_mul_f32 v[22:23], v[22:23], v[14:15] op_sel_hi:[1,0]')
    a('v_pk_mul_f32 v[24:25], v[24:25], v[14:15] op_sel_hi:[1,0]')
    T0, T1 = 8, 10
    def cmul(d, x, y):
        a(f'v_pk_mul_f32 {vr(T0,2)}, {vr(x+2,2)}, {vr(y+2,2)}')
        a(f'v_pk_mul_f32 {vr(T1,2)}, {vr(x+2,2)}, {vr(y,2)}')
        a(f'v_pk_fma_f32 {vr(d+2,2)}, {vr(x,2)}, {vr(y+2,2)}, {vr(T1,2)}')
        a(f'v_pk_fma_f32 {vr(d,2)}, {vr(x,2)}, {vr(y,2)}, {vr(T0,2)} neg_lo:[0,0,1] neg_hi:[0,0,1]')
    CV = [12, 16]
    cnt = [0]
    def emit(x, row, neg=False):
        t = (12, 14)[cnt[0] & 1]; cnt[0] += 1
        n = '-' if neg else ''
        a(f'v_cvt_pk_bf16_f32 v{t}, v{x}, v{x+1}')
        a(f'v_cvt_pk_bf16_f32 v{t+1}, {n}v{x+2}, {n}v{x+3}')
        a(f'ds_write_b64 v4, {vr(t,2)} offset:{row*528}')
    W = 30; P1 = 34; E8 = 38; Q1 = 42; R = 46; P2 = 22; P4 = 26; Q = 50
    cmul(W, 22, 26)
    def cexp(d, scale):
        if scale == 1.0:
            a(f'v_exp_f32 v{T0}, v18\nv_exp_f32 v{T0+1}, v19\nv_fract_f32 v{T1}, v20\nv_fract_f32 v{T1+1}, v21')
        else:
            a(f's_mov_b32 s27, {f2u(scale)}')
            a(f'v_mul_f32 v{T0}, s27, v18\nv_mul_f32 v{T0+1}, s27, v19\nv_mul_f32 v{T1}, s27, v20\nv_mul_f32 v{T1+1}, s27, v21')
            a(f'v_exp_f32 v{T0}, v{T0}\nv_exp_f32 v{T0+1}, v{T0+1}\nv_fract_f32 v{T1}, v{T1}\nv_fract_f32 v{T1+1}, v{T1+1}')
        a(f'v_cos_f32 v{d}, v{T1}\nv_cos_f32 v{d+1}, v{T1+1}\nv_sin_f32 v{d+2}, v{T1}\nv_sin_f32 v{d+3}, v{T1+1}')
        a(f'v_pk_mul_f32 {vr(d,2)}, {vr(d,2)}, {vr(T0,2)}\nv_pk_mul_f32 {vr(d+2,2)}, {vr(d+2,2)}, {vr(T0,2)}')
    cexp(E8, 8.0); cexp(P1, 1.0); cexp(Q1, 128.0)
    VF = 56
    UF = 104
    for b in range(16):
        emit(W, b, neg=True)
        if b < 15: cmul(W, W, E8)
    for kk in range(8):
        a(f'ds_read_b128 {vr(VF+4*kk,4)}, v5 offset:{64*kk}')
    def readU():
        for kk in range(8):
            a(f'ds_read_b128 {vr(UF+4*kk,4)}, v5 offset:{64*kk}')
    def mm(acc, swap, first_zero):
        for kk in range(8):
            A, B = (VF+4*kk, UF+4*kk) if swap else (UF+4*kk, VF+4*kk)
            c = '0' if (kk == 0 and first_zero) else vr(acc, 4)
            a(f'v_mfma_f32_16x16x32_bf16 {vr(acc,4)}, {vr(A,4)}, {vr(B,4)}, {c}')
    a('v_mov_b32 v12, 0x3f803f80\nv_mov_b32 v13, 0\nds_write_b64 v4, v[12:13]'); cnt[0] = 1
    emit(P1, 1)
    cmul(P2, P1, P1); emit(P2, 2)
    cmul(R, P2, P1); emit(R, 3)
    cmul(P4, R, P1); emit(P4, 4)
    cmul(R, P4, P1); emit(R, 5)
    cmul(R, R, P1); emit(R, 6)
    cmul(R, R, P1); emit(R, 7)
    emit(Q1, 8)
    cmul(R, Q1, P1); emit(R, 9)
    for c in range(2, 8):
        cmul(R, R, P1); emit(R, 8+c)
    readU()
    cmul(Q, Q1, Q1)
    for aa in (2, 3):
        emit(Q, 4*(aa-2))
        cmul(R, Q, P2); emit(R, 4*(aa-2)+1)
        cmul(R, R, P2); emit(R, 4*(aa-2)+2)
        cmul(R, R, P2); emit(R, 4*(aa-2)+3)
        cmul(Q, Q, Q1)
        if aa == 2:
            a('s_waitcnt lgkmcnt(4)')
            mm(88, False, False)
    for aa in range(4, 8):
        emit(Q, 8+2*(aa-4))
        cmul(R, Q, P4); emit(R, 8+2*(aa-4)+1)
        cmul(Q, Q, Q1)
    readU()
    for aa in range(8, 17):
        emit(Q, aa-8)
        if aa < 16: cmul(Q, Q, Q1)
        if aa == 11:
            a('s_waitcnt lgkmcnt(4)')
            mm(92, False, True)
    readU()
    a('v_cvt_pk_bf16_f32 v88, v88, v89\nv_cvt_pk_bf16_f32 v89, v90, v91')
    a(f's_add_u32 s6, s6, {KT_OFF}\ns_addc_u32 s7, s7, 0')
    a('global_store_dwordx2 v100, v[88:89], s[6:7]')
    a('v_cvt_pk_bf16_f32 v92, v92, v93\nv_cvt_pk_bf16_f32 v93, v94, v95')
    a('global_store_dword v102, v92, s[6:7] offset:512\nglobal_store_dword v101, v93, s[6:7] offset:516')
    a('s_waitcnt lgkmcnt(0)')
    mm(96, True, True)
    a('v_cvt_pk_bf16_f32 v96, v96, v97\nv_cvt_pk_bf16_f32 v97, v98, v99')
    a('global_store_dwordx2 v103, v[96:97], s[6:7] offset:1024')
    a('s_endpgm')
    a.end_kernel(name, 136, sgpr=40)


def gen_k2(a):
    name = 'k2_kernel'
    HB = 4608
    CS = 4160
    WB = HB + 4*CS
    a.launch(name, 144, 256, lds=4*WB)
    a.kernel(name)
    a('s_cmp_ge_u32 s2, 144\ns_cbranch_scc1 K2_END')
    a('s_load_dwordx2 s[6:7], s[0:1], 136')
    a('v_lshrrev_b32 v1, 6, v0')
    a('v_readfirstlane_b32 s3, v1')
    a('v_and_b32 v2, 63, v0\nv_and_b32 v3, 15, v0\nv_bfe_u32 v4, v0, 4, 2')
    a('s_lshl_b32 s4, s2, 2\ns_add_u32 s4, s4, s3')
    a(f's_mul_i32 s5, s3, {WB}')
    a('v_mul_u32_u24 v5, 36864, v3\nv_lshl_add_u32 v5, v4, 4, v5')
    a('v_lshlrev_b32 v6, 3, v2\nv_lshlrev_b32 v7, 2, v2')
    a('s_lshl_b32 s16, s4, 6\ns_mul_i32 s17, s4, 1536\ns_lshl_b32 s18, s4, 2')
    a('s_waitcnt lgkmcnt(0)')
    a('s_add_u32 s20, s6, s18\ns_addc_u32 s21, s7, 0')
    a(f's_load_dword s22, s[20:21], {MOD_OFF}\ns_load_dword s23, s[20:21], {MOD_OFF+576*4}\ns_load_dword s24, s[20:21], {MOD_OFF+2*576*4}')
    a.srd(8, 6, 576*1536, off=KT_OFF)
    a.srd(12, 6, 2048*576*4, off=XT_OFF)
    a('buffer_load_dwordx2 v[8:9], v6, s[8:11], s17 offen')
    a('buffer_load_dwordx2 v[10:11], v7, s[8:11], s17 offen offset:512')
    a('buffer_load_dwordx2 v[12:13], v7, s[8:11], s17 offen offset:768')
    a('buffer_load_dwordx2 v[14:15], v7, s[8:11], s17 offen offset:1024')
    X = 32
    for u in range(8):
        a(f'buffer_load_dwordx4 {vr(X+4*u,4)}, v5, s[12:15], s16 offen')
        if u < 7: a(f's_add_u32 s16, s16, {16*36864}')
    a('v_mov_b32 v16, 0\nv_mov_b32 v17, 0')
    a('v_add_u32 v6, s5, v6')
    a('ds_write_b64 v6, v[16:17] offset:4096')
    a(f'v_lshrrev_b32 v18, 2, v3\nv_mul_u32_u24 v18, {CS}, v18\nv_and_b32 v19, 3, v3\nv_lshl_add_u32 v18, v19, 3, v18\nv_add_u32 v18, s5, v18')
    a(f'ds_write_b64 v18, v[16:17] offset:{HB}')
    a('v_lshlrev_b32 v20, 4, v2\nv_add_u32 v20, s5, v20')
    a('v_lshlrev_b32 v21, 5, v2\nv_add_u32 v21, s5, v21')
    a('v_lshlrev_b32 v24, 5, v3\nv_sub_u32 v24, s5, v24\nv_lshlrev_b32 v25, 3, v4\nv_sub_u32 v22, v24, v25\nv_add_u32 v22, 504, v22')
    a('v_lshl_add_u32 v23, v4, 4, v24\nv_add_u32 v23, 480, v23')
    a(f'v_sub_u32 v25, 3, v3\nv_and_b32 v25, 3, v25\nv_mul_u32_u24 v26, {CS+2}, v25\nv_lshl_add_u32 v26, v3, 1, v26\nv_lshl_add_u32 v26, v4, 4, v26\nv_add_u32 v26, s5, v26\nv_add_u32 v26, {HB+2}, v26')
    a('s_mov_b32 s25, 0x01000100\ns_mov_b32 s26, 0x03020302\ns_mov_b32 s27, 0xffff0000')
    C0 = HB + 32
    a('s_waitcnt vmcnt(8)')
    a(f'ds_write_b64 v6, v[8:9] offset:{C0}')
    a('v_perm_b32 v16, v10, v10, s25\nv_alignbit_b32 v17, v11, v10, 16')
    a(f'ds_write_b64 v6, v[16:17] offset:{C0+512}')
    a('v_perm_b32 v64, v12, v12, s25\nv_mov_b32 v65, v12\nv_perm_b32 v66, v12, v12, s26\nv_perm_b32 v67, v13, v13, s25')
    a(f'ds_write_b128 v20, v[64:67] offset:{C0+1024}')
    a('v_perm_b32 v68, v14, v14, s25\nv_perm_b32 v69, v14, v14, s25\nv_mov_b32 v70, v14\nv_perm_b32 v71, v14, v14, s26')
    a('v_perm_b32 v72, v14, v14, s26\nv_perm_b32 v73, v14, v14, s26\nv_perm_b32 v74, v15, v15, s25\nv_perm_b32 v75, v15, v15, s25')
    a(f'ds_write_b128 v21, v[68:71] offset:{C0+2048}\nds_write_b128 v21, v[72:75] offset:{C0+2048+16}')
    for t in range(4):
        b = 80 + 8*t
        a(f'ds_read_b64 {vr(b+2,2)}, v20 offset:{C0+1024*t-8}\nds_read_b128 {vr(b+4,4)}, v20 offset:{C0+1024*t}')
    a('s_waitcnt lgkmcnt(0)')
    a('v_mov_b32 v28, s23')
    a('v_mov_b32 v30, s22')
    for t in range(4):
        b = 80 + 8*t; o = 112 + 12*(t & 1)
        for j in range(4): a(f'v_alignbit_b32 v{o+j}, v{b+4+j}, v{b+3+j}, 16')
        a(f'ds_write_b128 v20, {vr(o,4)} offset:{C0+CS+1024*t}')
        a(f'v_pk_mov_b32 {vr(o+4,2)}, {vr(b+2,2)}, {vr(b+4,2)} op_sel:[1,0]\nv_pk_mov_b32 {vr(o+6,2)}, {vr(b+4,2)}, {vr(b+6,2)} op_sel:[1,0]')
        a(f'ds_write_b128 v20, {vr(o+4,4)} offset:{C0+2*CS+1024*t}')
        for j in range(4): a(f'v_alignbit_b32 v{o+8+j}, v{b+3+j}, v{b+2+j}, 16')
        a(f'ds_write_b128 v20, {vr(o+8,4)} offset:{C0+3*CS+1024*t}')
    for u in range(8):
        a(f's_waitcnt vmcnt({7-u})')
        t = 64 + 8*(u & 1)
        for j in range(4): a(f'v_and_b32 v{t+j}, s27, v{X+4*u+j}')
        a(f'v_pk_fma_f32 {vr(t,2)}, {vr(t,2)}, v[28:29], v[30:31] op_sel_hi:[1,0,0]\nv_pk_fma_f32 {vr(t+2,2)}, {vr(t+2,2)}, v[28:29], v[30:31] op_sel_hi:[1,0,0]')
        a(f'v_cvt_pk_bf16_f32 v{t+4}, v{t+3}, v{t+2}\nv_cvt_pk_bf16_f32 v{t+5}, v{t+1}, v{t}')
        a(f'ds_write_b64 v22, {vr(t+4,2)} offset:{(7-u)*512}')
    ACC = 64
    FR = [96, 160]
    def reads(i):
        f = FR[i & 1]; L = []
        for k in range(8):
            L.append(f'ds_read_b128 {vr(f+32+4*k,4)}, v23 offset:{64*i+512*(7-k)}')
            L.append(f'ds_read_b64 {vr(f+4*k,2)}, v26 offset:{64*i+512*k}')
            L.append(f'ds_read_b64 {vr(f+4*k+2,2)}, v26 offset:{64*i+512*k+8}')
        return L
    for s in reads(0): a(s)
    a('v_mul_u32_u24 v5, 18432, v3\nv_lshl_add_u32 v5, v4, 3, v5')
    a.srd(12, 6, 2048*576*2, off=X1T_OFF)
    a('s_lshl_b32 s16, s4, 5')
    for i in range(8):
        a('s_waitcnt lgkmcnt(0)')
        f = FR[i & 1]
        fill = reads(i+1) if i < 7 else []
        if i == 0: fill = fill + [f'v_lshlrev_b32 v{X+j}, 16, v{X+j}' for j in range(12)]
        if i == 1: fill = fill + [f'v_lshlrev_b32 v{X+j}, 16, v{X+j}' for j in range(12, 24)]
        if i == 2: fill = fill + [f'v_lshlrev_b32 v{X+j}, 16, v{X+j}' for j in range(24, 32)]
        first = set()
        for u in range(8):
            for al in range(u+1):
                be = u - al
                c = '0' if (i == 0 and al == 0) else vr(ACC+4*u, 4)
                a(f'v_mfma_f32_16x16x32_bf16 {vr(ACC+4*u,4)}, {vr(f+4*al,4)}, {vr(f+32+4*be,4)}, {c}')
                if fill: a(fill.pop(0))
                if i == 7 and fill: a(fill.pop(0))
            if i == 7 and u >= 2:
                v = u - 2
                fill += epi2(v, ACC, X)
    for v in (6, 7): fill += epi2(v, ACC, X)
    for s in fill: a(s)
    a('K2_END:\ns_endpgm')
    a.end_kernel(name, 224, sgpr=40)

def epi2(u, ACC, X):
    L = []
    for j in range(4): L.append(f'v_fma_f32 v{X+4*u+j}, v{ACC+4*u+j}, s24, v{X+4*u+j}')
    L.append(f'v_cvt_pk_bf16_f32 v{X+4*u}, v{X+4*u}, v{X+4*u+1}')
    L.append(f'v_cvt_pk_bf16_f32 v{X+4*u+1}, v{X+4*u+2}, v{X+4*u+3}')
    L.append(f'buffer_store_dwordx2 {vr(X+4*u,2)}, v5, s[12:15], s16 offen')
    if u < 7: L.append(f's_add_u32 s16, s16, {16*18432}')
    return L


def gen_k3(a):
    name = 'k3_kernel'
    a.launch(name, 128, 576, lds=18432+128)
    a.kernel(name)
    a('s_cmp_ge_u32 s2, 128\ns_cbranch_scc1 K3_END')
    a('s_load_dwordx2 s[6:7], s[0:1], 136')
    a('v_lshrrev_b32 v1, 6, v0')
    a('v_readfirstlane_b32 s3, v1')
    a('v_and_b32 v2, 63, v0\nv_lshlrev_b32 v3, 4, v2')
    a('v_bfe_u32 v4, v0, 4, 2\nv_lshlrev_b32 v4, 4, v4\nv_lshl_add_u32 v4, v1, 8, v4')
    a('s_lshl_b32 s4, s3, 11\ns_mov_b32 m0, s4')
    a('s_mul_i32 s5, s2, 18432\ns_add_u32 s5, s5, s4')
    a('v_and_b32 v5, 15, v0\nv_lshlrev_b32 v5, 3, v5')
    a('v_mov_b32 v6, 0\nv_mov_b32 v7, 0')
    a('ds_write_b64 v5, v[6:7] offset:18432')
    a('v_lshl_add_u32 v2, v2, 3, s4')
    a('s_waitcnt lgkmcnt(0)')
    a.srd(8, 6, 2048*576*2, off=X1T_OFF)
    a('buffer_load_dwordx4 v3, s[8:11], s5 offen lds\nbuffer_load_dwordx4 v3, s[8:11], s5 offen offset:1024 lds')
    a(f's_add_u32 s12, s6, {MOD_OFF + 3*576*4}\ns_addc_u32 s13, s7, 0')
    for q in range(4):
        a(f'global_load_dwordx4 {vr(32+4*q,4)}, v4, s[12:13] offset:{64*q}')
        a(f'global_load_dwordx4 {vr(48+4*q,4)}, v4, s[12:13] offset:{576*4+64*q}')
    a.srd(8, 6, 2048*576*2, off=H2F_OFF)
    a('s_mov_b32 s17, 0xffff0000')
    a('s_barrier')
    a('s_waitcnt vmcnt(8)')
    for q in range(4):
        a(f'ds_read_b64_tr_b16 {vr(8+2*q,2)}, v2 offset:{512*q}')
    for q in range(4):
        a(f's_waitcnt lgkmcnt({3-q})')
        for h in range(2):
            a(f'v_lshlrev_b32 v{16+4*q+2*h}, 16, v{8+2*q+h}\nv_and_b32 v{17+4*q+2*h}, s17, v{8+2*q+h}')
        for h in range(2):
            x = vr(16+4*q+2*h, 2)
            if q == 0 and h == 0:
                a(f'v_pk_mul_f32 v[64:65], {x}, {x}')
            elif q == 0:
                a(f'v_pk_add_f32 v[6:7], {vr(16,2)}, {x}\nv_pk_fma_f32 v[64:65], {x}, {x}, v[64:65]')
            else:
                a(f'v_pk_add_f32 v[6:7], v[6:7], {x}\nv_pk_fma_f32 v[64:65], {x}, {x}, v[64:65]')
    a('v_add_f32 v6, v6, v7\nv_add_f32 v64, v64, v65')
    a('ds_add_f32 v5, v6 offset:18432\nds_add_f32 v5, v64 offset:18436')
    a('s_waitcnt lgkmcnt(0)\ns_barrier')
    a('ds_read_b64 v[6:7], v5 offset:18432')
    a('s_waitcnt lgkmcnt(0)')
    a(f'v_mul_f32 v6, {f2u(1/576)}, v6\nv_mul_f32 v7, {f2u(1/576)}, v7')
    a('v_fma_f32 v7, -v6, v6, v7\nv_max_f32 v7, 0, v7')
    bf16_round(a, 7, 7)
    a(f'v_add_f32 v7, {f2u(1e-5)}, v7')
    bf16_round(a, 7, 7)
    a('v_sqrt_f32 v7, v7')
    bf16_round(a, 7, 7)
    a('v_rcp_f32 v7, v7')
    bf16_round(a, 6, 6)
    a('v_mul_f32 v6, v6, v7')
    a('s_waitcnt vmcnt(0)')
    for k in range(8):
        x = vr(16+2*k, 2)
        a(f'v_pk_fma_f32 {x}, {x}, v[6:7], v[6:7] op_sel:[0,1,0] op_sel_hi:[1,1,0] neg_lo:[0,0,1] neg_hi:[0,0,1]')
    for k in range(8):
        x = vr(16+2*k, 2)
        a(f'v_pk_fma_f32 {x}, {x}, {vr(48+2*k,2)}, {vr(32+2*k,2)}')
    for k in range(8):
        a(f'v_cvt_pk_bf16_f32 v{8+k}, v{16+2*k}, v{17+2*k}')
    a('buffer_store_dwordx4 v[8:11], v3, s[8:11], s5 offen\nbuffer_store_dwordx4 v[12:15], v3, s[8:11], s5 offen offset:1024')
    a('K3_END:\ns_endpgm')
    a.end_kernel(name, 72, sgpr=40)


class VmTrack:
    def __init__(self): self.n = 0; self.idx = {}; self.done = -1
    def issue(self, tag=None):
        if tag is not None: self.idx[tag] = self.n
        self.n += 1
        assert self.n - 1 - self.done <= 63, ('too many outstanding', tag)
    def wait_for(self, tags):
        k = max(self.idx[t] for t in tags)
        if k <= self.done: return None
        self.done = k
        c = self.n - 1 - k
        assert c <= 63
        return f's_waitcnt vmcnt({c})'

def gen_k4(a, store_flags='', D=4, pre_steps=10):
    name = 'k4_kernel'
    NSLOT = 20
    a.launch(name, 256, 256, lds=NSLOT*8192)
    a.kernel(name)
    a('s_cmp_ge_u32 s2, 256\ns_cbranch_scc1 K4_END')
    a('s_load_dwordx4 s[4:7], s[0:1], 80')
    a('s_load_dwordx2 s[8:9], s[0:1], 136')
    a('v_lshrrev_b32 v1, 6, v0')
    a('v_readfirstlane_b32 s3, v1')
    a('s_and_b32 s10, s2, 1\ns_lshl_b32 s10, s10, 2\ns_bfe_u32 s11, s2, 0x20003\ns_add_u32 s10, s10, s11')
    a('s_and_b32 s11, s2, 6\ns_bfe_u32 s12, s2, 0x10005\ns_add_u32 s11, s11, s12')
    a('s_lshr_b32 s12, s2, 6')
    a('s_mul_i32 s13, s11, 9\ns_lshl_b32 s14, s12, 1\ns_add_u32 s14, s14, s13')
    a('s_add_u32 s13, s13, 8')
    a('s_lshl_b32 s15, s10, 4\ns_lshl_b32 s16, s3, 2\ns_add_u32 s15, s15, s16')
    a('s_mul_i32 s40, s15, 18432')
    a(f's_mul_i32 s41, s15, {144*1024}')
    a('s_lshl_b32 s16, s14, 11\ns_add_u32 s42, s41, s16')
    a('s_lshl_b32 s16, s13, 11\ns_add_u32 s43, s41, s16\ns_lshr_b32 s16, s12, 1\ns_lshl_b32 s16, s16, 10\ns_add_u32 s43, s43, s16\ns_and_b32 s16, s12, 1\ns_lshl_b32 s16, s16, 3\ns_add_u32 s43, s43, s16')
    a('s_lshl_b32 s44, s14, 7')
    a('s_lshl_b32 s45, s13, 7\ns_lshl_b32 s16, s12, 5\ns_add_u32 s45, s45, s16')
    a(f's_lshr_b32 s16, s3, 1\ns_mul_i32 s16, s16, {32*9216}\ns_add_u32 s45, s45, s16')
    a('s_lshl_b32 s46, s3, 10')
    H = 8
    WF = 40
    ACC = 64
    NB = 6
    a('v_and_b32 v0, 63, v0\nv_lshlrev_b32 v1, 4, v0')
    a('v_lshrrev_b32 v2, 3, v0\nv_and_b32 v3, 6, v2\nv_and_b32 v4, 7, v0\nv_xor_b32 v3, v3, v4\nv_lshlrev_b32 v3, 4, v3')
    a('s_lshl_b32 s16, s3, 3\nv_add_u32 v2, s16, v2\nv_mul_u32_u24 v2, 9216, v2\nv_add_u32 v2, v2, v3')
    a('s_waitcnt lgkmcnt(0)')
    a.srd(20, 4, 576*9216)
    a.srd(24, 6, 576*9216)
    a.srd(28, 8, 2048*576*2, off=H2F_OFF)
    vm = VmTrack()
    def hreg(m, kk):
        idx = kk*4 + m
        return f'a[{4*idx}:{4*idx+3}]' if idx < 64 else vr(H + 4*(idx-64), 4)
    units = []
    for k in range(18): units.append(dict(ph=1, k=k, size=8192))
    for ph in (2, 3):
        for u in range(9): units.append(dict(ph=ph, k=u, size=8192))
    for u in range(9): units.append(dict(ph=4, k=u, size=4096))
    pos = 0
    for u in units:
        if pos + u['size'] > NSLOT*8192: pos = 0
        u['lds'] = pos; pos += u['size']
    def dma_ops(ui):
        u = units[ui]; L = []
        if u['ph'] == 1:
            L.append(('s', f's_add_u32 s17, s44, {u["k"]*32*9216}'))
            vo = 'v2'
        elif u['ph'] in (2, 3):
            L.append(('s', f's_add_u32 s17, s44, {128 + (u["ph"]-2)*64 + u["k"]*64*9216}'))
            vo = 'v5'
        else:
            L.append(('s', f's_add_u32 s17, s45, {u["k"]*64*9216}'))
            L.append(('s', f's_add_u32 m0, s46, {u["lds"]}'))
            L.append(('v', f'buffer_load_dwordx4 v2, s[36:39], s17 offen lds', ('dma', ui)))
            return L
        L.append(('s', f's_add_u32 m0, s46, {u["lds"]}'))
        L.append(('v', f'buffer_load_dwordx4 {vo}, s[20:23], s17 offen lds', None))
        L.append(('s', f's_add_u32 m0, s46, {u["lds"]+4096}'))
        L.append(('v', f'buffer_load_dwordx4 {vo}, s[24:27], s17 offen lds', ('dma', ui)))
        return L
    def h_ops(kk):
        L = []
        for m in range(4):
            L.append(('s', f's_add_u32 s18, s40, {(m*18+kk)*1024}'))
            L.append(('v', f'buffer_load_dwordx4 {hreg(m,kk)}, v1, s[28:31], s18 offen', ('h', kk) if m == 3 else None))
        return L
    def emit_op(op):
        if op[0] == 'v': vm.issue(op[2])
        a(op[1])
    for k in range(pre_steps):
        for op in dma_ops(k) + h_ops(k): emit_op(op)
    a.srd(32, 8, 2048*4608*2, off=ACT_OFF)
    a('s_bitcmp1_b32 s3, 0\ns_cselect_b32 s36, s6, s4\ns_cselect_b32 s37, s7, s5')
    a(f's_mov_b32 s38, {576*9216}\ns_mov_b32 s39, 0x00020000')
    a('v_lshrrev_b32 v5, 2, v0\nv_lshrrev_b32 v3, 3, v0\nv_and_b32 v3, 2, v3\nv_and_b32 v4, 3, v0\nv_xor_b32 v3, v3, v4\nv_lshlrev_b32 v3, 4, v3')
    a('s_lshl_b32 s16, s3, 4\nv_add_u32 v5, s16, v5\nv_mul_u32_u24 v5, 9216, v5\nv_add_u32 v5, v5, v3')
    TR1 = [3, 4, 6, 7]
    t0, t1 = ACC+160, ACC+161
    a(f'v_lshrrev_b32 v{t0}, 2, v0\nv_lshlrev_b32 v{t0}, 7, v{t0}\nv_and_b32 v{t1}, 3, v0\nv_lshl_add_u32 v{t0}, v{t1}, 3, v{t0}\nv_bfe_u32 v{t1}, v0, 3, 2')
    for t in range(4):
        a(f'v_xor_b32 v{TR1[t]}, {t}, v{t1}\nv_lshl_add_u32 v{TR1[t]}, v{TR1[t]}, 5, v{t0}')
    frags = []
    for k in range(18):
        for t in range(4):
            for mat in range(2):
                frags.append(dict(unit=k, key=('p1', t), off=units[k]['lds'] + mat*4096, hs=2048, slot=t, mat=mat, kk=k))
    for ph, slots in ((2, (4, 5)), (3, (0, 1))):
        for k in range(18):
            ui = 18 + (ph-2)*9 + k//2
            for t in range(2):
                for mat in range(2):
                    frags.append(dict(unit=ui, key=('p2', t), off=units[ui]['lds'] + mat*4096 + (k & 1)*2048, hs=1024, slot=slots[t], mat=mat, kk=k))
    for k in range(18):
        ui = 36 + k//2
        for mat in range(2):
            frags.append(dict(unit=ui, key=('p4', 0), off=units[ui]['lds'] + (k & 1)*2048 + mat*1024, hs=512, slot=2, mat=mat, kk=k))
    NF = len(frags)
    areg = {('p1', t): TR1[t] for t in range(4)}
    abase = {k: 0 for k in areg}
    def addr_setup(key):
        if key == ('p2', 0):
            areg[('p2', 0)] = 3; areg[('p2', 1)] = 4; abase[('p2', 0)] = 0; abase[('p2', 1)] = 0
            return ['v_lshrrev_b32 v3, 2, v0', 'v_lshlrev_b32 v3, 6, v3', 'v_and_b32 v4, 3, v0', 'v_lshl_add_u32 v3, v4, 3, v3',
                    'v_bfe_u32 v4, v0, 4, 1', 'v_lshl_add_u32 v3, v4, 5, v3', 'v_xor_b32 v4, 32, v3']
        if key == ('p4', 0):
            areg[key] = 6; abase[key] = 0
            return ['v_lshlrev_b32 v6, 3, v0']
        return []
    def read_ops(j):
        f = frags[j]; L = []
        if f['key'] not in areg: L += addr_setup(f['key'])
        r = areg[f['key']]
        lo = f['off'] - abase[f['key']]
        if lo < 0 or lo + f['hs'] > 65535:
            nb = f['off'] if f['off'] >= 49152 else 0
            L.append(f'v_add_u32 v{r}, {(nb - abase[f["key"]]) & 0xffffffff}, v{r}')
            abase[f['key']] = nb; lo = f['off'] - nb
        b = WF + 4*(j % NB)
        L.append(f'ds_read_b64_tr_b16 {vr(b,2)}, v{r} offset:{lo}')
        L.append(f'ds_read_b64_tr_b16 {vr(b+2,2)}, v{r} offset:{lo+f["hs"]}')
        return L
    def acc(slot, mat, m): return ACC + 32*slot + 16*mat + 4*m
    def epi_pair(sa_, sb_, soff_reg, fragoff):
        L = []
        for m in range(4):
            for s in (sa_, sb_):
                g, u = acc(s, 0, m), acc(s, 1, m)
                for r in range(4): L.append(('a', f'v_max_f32 v{g+r}, 0, v{g+r}'))
                for r in range(4): L.append(('a', f'v_mul_f32 v{g+r}, v{g+r}, v{u+r}'))
            o = acc(sa_, 1, m); ga_, gb_ = acc(sa_, 0, m), acc(sb_, 0, m)
            L.append(('a', f'v_cvt_pk_bf16_f32 v{o}, v{ga_}, v{ga_+1}')); L.append(('a', f'v_cvt_pk_bf16_f32 v{o+1}, v{ga_+2}, v{ga_+3}'))
            L.append(('a', f'v_cvt_pk_bf16_f32 v{o+2}, v{gb_}, v{gb_+1}')); L.append(('a', f'v_cvt_pk_bf16_f32 v{o+3}, v{gb_+2}, v{gb_+3}'))
            L.append(('s', f's_add_u32 s19, s{soff_reg}, {m*144*1024 + fragoff*1024}'))
            L.append(('v', f'buffer_store_dwordx4 {vr(o,4)}, v1, s[32:35], s19 offen {store_flags}', None))
        return L
    def epi_single(s):
        L = []
        for m in range(4):
            g, u = acc(s, 0, m), acc(s, 1, m)
            for r in range(4): L.append(('a', f'v_max_f32 v{g+r}, 0, v{g+r}'))
            for r in range(4): L.append(('a', f'v_mul_f32 v{g+r}, v{g+r}, v{u+r}'))
            L.append(('a', f'v_cvt_pk_bf16_f32 v{u}, v{g}, v{g+1}')); L.append(('a', f'v_cvt_pk_bf16_f32 v{u+1}, v{g+2}, v{g+3}'))
            L.append(('s', f's_add_u32 s19, s43, {m*144*1024}'))
            L.append(('v', f'buffer_store_dwordx2 {vr(u,2)}, v1, s[32:35], s19 offen {store_flags}', None))
        return L
    groups = [[k] for k in range(18)] + [[18, 19, 20], [21, 22, 23], [24, 25, 26], [27, 28, 29], [30, 31, 32], [33, 34, 35], [36, 37, 38, 39], [40, 41, 42, 43, 44]]
    first_of = {g[0]: g for g in groups}
    published = set()
    last_read = {}
    for j, f in enumerate(frags): last_read[f['unit']] = j
    barrier_at = []
    loadq = []
    next_h = pre_steps; next_dma = pre_steps
    fillq = []
    def slot_free(ui, jnow):
        u = units[ui]
        for v in range(ui):
            w = units[v]
            if w['lds'] < u['lds'] + u['size'] and u['lds'] < w['lds'] + w['size']:
                if not any(b > last_read[v] for b in barrier_at): return False
        return True
    def publish(j_read, jnow):
        ui = frags[j_read]['unit']
        if ui in published: return
        g = first_of[ui]
        tags = [('dma', x) for x in g]
        if frags[j_read]['key'][0] == 'p1': tags.append(('h', frags[j_read]['kk']))
        w = vm.wait_for(tags)
        if w: a(w)
        a('s_barrier'); barrier_at.append(jnow)
        published.update(g)
    publish(0, -1)
    for j in range(D):
        for s in read_ops(j): a(s)
    p4_setup_done = False
    for j in range(NF):
        f = frags[j]
        if j % 8 == 0:
            if next_h < 18:
                loadq += dma_ops(next_dma) + h_ops(next_h); next_dma += 1; next_h += 1
            else:
                cnt = 0
                while next_dma < len(units) and cnt < 2 and slot_free(next_dma, j):
                    if units[next_dma]['ph'] == 4 and not p4_setup_done:
                        loadq += [('a', 'v_lshrrev_b32 v2, 1, v0'), ('a', 'v_mul_u32_u24 v2, 576, v2'), ('a', 'v_and_b32 v7, 1, v0'), ('a', 'v_add_lshl_u32 v2, v2, v7, 4')]
                        p4_setup_done = True
                    loadq += dma_ops(next_dma); next_dma += 1; cnt += 1
        if j == 144 + 2: fillq += epi_pair(0, 1, 42, 0) + epi_pair(2, 3, 42, 1)
        if j == 144 + 72 + 2:
            assert not fillq
            fillq += epi_pair(4, 5, 42, 2)
        if j == 144 + 144 + 2:
            assert not fillq
            fillq += epi_pair(0, 1, 42, 3)
        if j == 144 + 72: assert not fillq, len(fillq)
        nout = min(D, NF - j) - 1
        a(f's_waitcnt lgkmcnt({2*nout})')
        rd = []
        if j + D < NF:
            publish(j + D, j)
            rd = read_ops(j + D)
        b = WF + 4*(j % NB)
        for m in range(4):
            c = acc(f['slot'], f['mat'], m)
            cin = '0' if f['kk'] == 0 else vr(c, 4)
            a(f'v_mfma_f32_16x16x32_bf16 {vr(c,4)}, {vr(b,4)}, {hreg(m, f["kk"])}, {cin}')
            budget = 2
            while budget > 0:
                if rd:
                    a(rd.pop(0)); budget -= 1
                elif loadq:
                    op = loadq.pop(0); emit_op(op)
                    if op[0] != 's': budget -= 1
                elif fillq:
                    op = fillq.pop(0); emit_op(op)
                    if op[0] != 's': budget -= 1
                else: break
        for s in rd: a(s)
    assert not fillq and not loadq and next_dma == len(units)
    for op in epi_single(2): emit_op(op)
    a('K4_END:\ns_endpgm')
    a.end_kernel(name, 512, sgpr=56, accum=256)


def gen_k5(a, P=6):
    name = 'k5_kernel'
    RING = P*4096
    WB = RING + 3072
    a.launch(name, 240, 256, lds=4*WB)
    a.kernel(name)
    a('s_cmp_ge_u32 s2, 240\ns_cbranch_scc1 K5_END')
    a('s_and_b32 s10, s2, 7\ns_mul_i32 s10, s10, 30\ns_lshr_b32 s11, s2, 3\ns_add_u32 s10, s10, s11')
    a('s_cmp_ge_u32 s10, 234\ns_cbranch_scc1 K5_END')
    a('s_load_dwordx2 s[4:5], s[0:1], 96')
    a('s_load_dwordx2 s[6:7], s[0:1], 120')
    a('s_load_dwordx2 s[8:9], s[0:1], 136')
    a('v_lshrrev_b32 v1, 6, v0')
    a('v_readfirstlane_b32 s3, v1')
    a(f's_mul_i32 s11, s10, {(65536+8)//9}\ns_lshr_b32 s11, s11, 16')
    a('s_mul_i32 s12, s11, 9\ns_sub_u32 s12, s10, s12')
    a('s_mul_i32 s13, s11, 5')
    a(f's_mul_i32 s40, s13, {144*1024}\ns_mul_i32 s16, s3, {36*1024}\ns_add_u32 s40, s40, s16')
    a(f's_mul_i32 s41, s3, {36*32*1152}\ns_lshl_b32 s16, s12, 7\ns_add_u32 s41, s41, s16')
    a(f's_mul_i32 s42, s3, {WB}')
    a('s_lshl_b32 s14, s12, 6\ns_lshl_b32 s16, s3, 4\ns_add_u32 s14, s14, s16')
    a('s_mul_i32 s43, s13, 18432\ns_lshl_b32 s16, s14, 5\ns_add_u32 s43, s43, s16')
    a('v_and_b32 v0, 63, v0\nv_lshlrev_b32 v1, 4, v0')
    a('v_lshrrev_b32 v2, 3, v0\nv_and_b32 v3, 6, v2\nv_and_b32 v4, 7, v0\nv_xor_b32 v3, v3, v4\nv_lshlrev_b32 v3, 4, v3')
    a('v_mul_u32_u24 v2, 1152, v2\nv_add_u32 v2, v2, v3')
    a('v_lshrrev_b32 v3, 5, v0\nv_mul_u32_u24 v3, 18432, v3\nv_and_b32 v4, 31, v0\nv_lshl_add_u32 v3, v4, 4, v3')
    a('s_waitcnt lgkmcnt(0)')
    a.srd(20, 4, 4608*1152)
    a.srd(24, 8, 2048*4608*2, off=ACT_OFF)
    a.srd(28, 8, 2048*576*2, off=X1T_OFF)
    AB = 16; WF = AB + 20*P; ACC = WF + 16; GB = ACC + 80
    def loads_dma(s):
        L = []
        for q in range(4):
            L.append(f's_add_u32 m0, s42, {s*4096 + q*1024}')
            L.append(f'buffer_load_dwordx4 v2, s[20:23], s41 offen lds\ns_add_u32 s41, s41, {8*1152}')
        return L
    def load_act(s, m):
        t = f's_add_u32 s18, s40, {m*144*1024}\n' if m else ''
        t += f'buffer_load_dwordx4 {vr(AB+20*s+4*m,4)}, v1, s[24:27], {"s18" if m else "s40"} offen'
        if m == 4: t += '\ns_add_u32 s40, s40, 1024'
        return t
    for s in range(P):
        for x in loads_dma(s): a(x)
        for m in range(5): a(load_act(s, m))
    a('v_lshrrev_b32 v8, 2, v0\nv_lshlrev_b32 v8, 7, v8\nv_and_b32 v9, 3, v0\nv_lshl_add_u32 v8, v9, 3, v8\nv_add_u32 v8, s42, v8\nv_bfe_u32 v9, v0, 3, 2')
    for t in range(4):
        a(f's_add_u32 s16, s3, {t}\ns_and_b32 s16, s16, 3\nv_xor_b32 v{4+t}, s16, v9\nv_lshl_add_u32 v{4+t}, v{4+t}, 5, v8')
    for i in range(80): a(f'v_mov_b32 v{ACC+i}, 0')
    a(f's_mov_b32 s44, {36//P}')
    a('.p2align 3')
    a('K5_LOOP:')
    a('s_cmp_eq_u32 s44, 1\ns_cselect_b32 s22, 0, s22\ns_cselect_b32 s26, 0, s26')
    for s in range(P):
        a(f's_waitcnt vmcnt({9*P-4})')
        for t in range(4):
            a(f'ds_read_b64_tr_b16 {vr(WF+4*t,2)}, v{4+t} offset:{s*4096}\nds_read_b64_tr_b16 {vr(WF+4*t+2,2)}, v{4+t} offset:{s*4096+2048}')
        dm = loads_dma(s)
        for m in range(5):
            if m == 0: a(f's_waitcnt vmcnt({9*P-5})')
            else: a(f's_waitcnt vmcnt({9*P-1})')
            for t in range(4):
                if m == 0: a(f's_waitcnt lgkmcnt({6-2*t})')
                c = ACC + 16*m + 4*t
                a(f'v_mfma_f32_16x16x32_bf16 {vr(c,4)}, {vr(WF+4*t,4)}, {vr(AB+20*s+4*m,4)}, {vr(c,4)}')
            if m == 0:
                for x in dm: a(x)
            a(load_act(s, m))
    a('s_sub_u32 s44, s44, 1\ns_cmp_lg_u32 s44, 0\ns_cbranch_scc1 K5_LOOP')
    a(f's_add_u32 m0, s42, {RING}')
    a('buffer_load_dwordx4 v3, s[28:31], s43 offen lds')
    a(f's_add_u32 m0, s42, {RING+1024}\ns_add_u32 s43, s43, {2*18432}')
    a('buffer_load_dwordx4 v3, s[28:31], s43 offen lds')
    a(f's_add_u32 m0, s42, {RING+2048}\ns_add_u32 s43, s43, {2*18432}')
    a('buffer_load_dwordx4 v3, s[28:31], s43 offen lds')
    a('v_bfe_u32 v9, v0, 4, 2\nv_lshlrev_b32 v10, 4, v9\ns_lshl_b32 s16, s14, 2\nv_add_u32 v10, s16, v10')
    a(f's_add_u32 s8, s8, {MOD_OFF+5*576*4}\ns_addc_u32 s9, s9, 0')
    a(f'global_load_dwordx4 {vr(GB,4)}, v10, s[8:9]')
    a('s_waitcnt vmcnt(4)')
    a('v_add_u32 v8, s42, v1')
    for t in range(1, 4):
        for m in range(5):
            a(f'ds_write_b128 v8, {vr(ACC+16*m+4*t,4)} offset:{((t-1)*5+m)*1024}')
    a('v_and_b32 v11, 15, v0\nv_mul_u32_u24 v11, 1152, v11\nv_lshl_add_u32 v11, v9, 3, v11')
    a.srd(32, 6, 2048*576*2)
    a('s_mul_i32 s45, s13, 18432\ns_lshl_b32 s16, s14, 1\ns_add_u32 s45, s45, s16')
    for t in range(1, 4):
        a(f's_sub_u32 s16, s3, {t}\ns_and_b32 s16, s16, 3\ns_mul_i32 s16, s16, {WB}\nv_add_u32 v{4+t}, s16, v1')
    a('v_lshlrev_b32 v4, 3, v0\nv_add_u32 v4, s42, v4')
    a('s_mov_b32 s17, 0xffff0000')
    a('s_waitcnt lgkmcnt(0)\ns_barrier')
    for m in range(5):
        for t in range(1, 4):
            a(f'ds_read_b128 {vr(AB+16*m+4*t,4)}, v{4+t} offset:{((t-1)*5+m)*1024}')
    a('s_waitcnt vmcnt(0)')
    for m in range(5):
        a(f'ds_read_b64_tr_b16 {vr(AB+16*m,2)}, v4 offset:{RING+m*512}')
    a('s_waitcnt lgkmcnt(5)')
    for m in range(5):
        c = ACC+16*m; b = AB+16*m
        for h in range(2):
            a(f'v_pk_add_f32 {vr(c+2*h,2)}, {vr(c+2*h,2)}, {vr(b+4+2*h,2)}\nv_pk_add_f32 {vr(b+8+2*h,2)}, {vr(b+8+2*h,2)}, {vr(b+12+2*h,2)}')
        for h in range(2):
            a(f'v_pk_add_f32 {vr(c+2*h,2)}, {vr(c+2*h,2)}, {vr(b+8+2*h,2)}')
    a('s_waitcnt lgkmcnt(0)')
    for m in range(5):
        c = ACC+16*m; b = AB+16*m
        a(f'v_lshlrev_b32 v{b+4}, 16, v{b}\nv_and_b32 v{b+5}, s17, v{b}\nv_lshlrev_b32 v{b+6}, 16, v{b+1}\nv_and_b32 v{b+7}, s17, v{b+1}')
        for h in range(2):
            a(f'v_pk_fma_f32 {vr(c+2*h,2)}, {vr(c+2*h,2)}, {vr(GB+2*h,2)}, {vr(b+4+2*h,2)}')
        a(f'v_cvt_pk_bf16_f32 v{c}, v{c}, v{c+1}\nv_cvt_pk_bf16_f32 v{c+1}, v{c+2}, v{c+3}')
        a(f'buffer_store_dwordx2 {vr(c,2)}, v11, s[32:35], s45 offen')
        if m < 4: a('s_add_u32 s45, s45, 18432')
    a('K5_END:\ns_endpgm')
    a.end_kernel(name, GB+4, sgpr=56)

HEADER = open('adaLN_cond__ssm_conv_s4__glu_gated_reglu__prompt.s.ref').read().split('; Override')[0] if False else ''

def build(upto=5):
    a = Asm()
    gen_k1(a)
    if upto >= 2: gen_k2(a)
    if upto >= 3: gen_k3(a)
    if upto >= 4: gen_k4(a)
    if upto >= 5: gen_k5(a)
    return a.text()

if __name__ == '__main__':
    txt = build()
    open(sys.argv[1], 'w').write(txt)
```

```python
import sys, math, struct, re
from ag import Asm

def f2u(x): return struct.unpack('<I', struct.pack('<f', x))[0]
LOG2E = f2u(1.4426950408889634)
INV2PI = f2u(0.15915494309189535)

MOD_OFF = 0
KT_OFF = 0x4000
XT_OFF = 0x100000
X1T_OFF = 0x600000
H2F_OFF = 0x900000
ACT_OFF = 0xC00000
WS_BYTES = 268435456

N_KGEN, N_LN, N_MOD = 144, 128, 108
ROLES = {0: [('kgen', 0, 144), ('ln', 144, 272), ('mod', 272, 380)], 1: [('conv', 0, 144), ('side', 144, 256)], 2: [('ln2', 0, 128), ('pack', 128, 243)]}

def vr(b, n): return f'v[{b}:{b+n-1}]' if n > 1 else f'v{b}'

def bf16_round(a, dst, src):
    a(f'v_cvt_pk_bf16_f32 v{dst}, v{src}, v{src}')
    a(f'v_lshlrev_b32 v{dst}, 16, v{dst}')

def gen_k1(a, codepf=True):
    name = 'k1_kernel'
    a.launch(name, N_KGEN + N_LN + N_MOD, 256, lds=4*16*528)
    a.kernel(name)
    a('s_load_dwordx2 s[6:7], s[0:1], 136')
    if codepf:
        a('s_cmp_ge_u32 s2, 8\ns_cbranch_scc1 K1_NOPF')
        a('s_getpc_b64 s[4:5]\nK1_PC0:\nv_lshlrev_b32 v1, 7, v0\nv_min_u32 v2, CODE_END-K1_PC0-4, v1\nglobal_load_dword v120, v2, s[4:5]')
        a('v_add_u32 v1, 0x8000, v1\nv_min_u32 v2, CODE_END-K1_PC0-4, v1\nglobal_load_dword v121, v2, s[4:5]')
        a('K1_NOPF:')
    a(f's_cmp_lt_u32 s2, {N_KGEN}\ns_cbranch_scc1 K1_KGEN')
    a(f's_cmp_lt_u32 s2, {N_KGEN+N_LN}\ns_cbranch_scc1 K1_LN')
    a(f's_cmp_lt_u32 s2, {N_KGEN+N_LN+N_MOD}\ns_cbranch_scc1 K1_MOD')
    a('s_endpgm')
    a('K1_MOD:')
    a('s_load_dwordx4 s[8:11], s[0:1], 104')
    a(f's_sub_u32 s3, s2, {N_KGEN+N_LN}')
    a('v_lshrrev_b32 v1, 6, v0\nv_mul_u32_u24 v1, 144, v1\nv_bfe_u32 v2, v0, 2, 4\nv_add_u32 v1, v1, v2')
    a('v_lshlrev_b32 v3, 1, v1')
    a('v_mul_u32_u24 v1, 6912, v1\nv_and_b32 v2, 3, v0\nv_lshlrev_b32 v2, 4, v2\nv_add_u32 v1, v1, v2')
    a('s_lshl_b32 s4, s3, 6')
    a('s_waitcnt lgkmcnt(0)')
    a(';MID 0')
    a.srd(12, 10, 576*6912)
    for i in range(9):
        a(f'global_load_ushort v{8+i}, v3, s[8:9] offset:{32*i}')
    for i in range(9):
        a(f'buffer_load_dwordx4 {vr(20+4*i,4)}, v1, s[12:15], s4 offen')
        if i < 8: a(f's_add_u32 s4, s4, {16*6912}')
    a(f's_mov_b32 s16, {f2u(-1.4426950408889634)}')
    a('s_mov_b32 s17, 0xffff0000')
    a('s_waitcnt vmcnt(9)')
    a(';MID')
    for i in range(9):
        a(f'v_lshlrev_b32 v{8+i}, 16, v{8+i}')
    for i in range(9):
        a(f'v_mul_f32 v{60+i}, s16, v{8+i}')
    for i in range(9):
        a(f'v_exp_f32 v{60+i}, v{60+i}')
    for i in range(9):
        a(f'v_add_f32 v{60+i}, 1.0, v{60+i}')
    for i in range(9):
        a(f'v_rcp_f32 v{60+i}, v{60+i}')
    for i in range(9):
        a(f'v_mul_f32 v{8+i}, v{8+i}, v{60+i}')
    for i in range(9):
        bf16_round(a, 8+i, 8+i)
    for i in range(9):
        a(f's_waitcnt vmcnt({8-i})')
        for j in range(4):
            w = 20+4*i+j
            a(f'v_lshlrev_b32 v60, 16, v{w}\nv_and_b32 v61, s17, v{w}')
            if i == 0:
                a(f'v_mul_f32 v{70+2*j}, v60, v{8+i}\nv_mul_f32 v{71+2*j}, v61, v{8+i}')
            else:
                a(f'v_fmac_f32 v{70+2*j}, v60, v{8+i}\nv_fmac_f32 v{71+2*j}, v61, v{8+i}')
    a(';MID')
    for sh in (4, 8):
        for j in range(8):
            a(f'v_add_f32_dpp v{70+j}, v{70+j}, v{70+j} row_ror:{sh} row_mask:0xf bank_mask:0xf')
    a('v_lshrrev_b32 v1, 4, v0\nv_lshlrev_b32 v1, 7, v1\nv_and_b32 v2, 3, v0\nv_lshlrev_b32 v2, 5, v2\nv_add_u32 v1, v1, v2')
    a('ds_write_b128 v1, v[70:73]\nds_write_b128 v1, v[74:77] offset:16')
    a('s_waitcnt lgkmcnt(0)\ns_barrier')
    a('v_cmp_gt_u32 vcc, 32, v0\ns_and_saveexec_b64 s[18:19], vcc\ns_cbranch_execz K1_END')
    a('v_lshlrev_b32 v1, 2, v0')
    for i in range(8):
        a(f'ds_read2_b32 {vr(20+2*i,2)}, v1 offset0:{64*i} offset1:{64*i+32}' if 64*i+32 < 256 else f'ds_read2st64_b32 {vr(20+2*i,2)}, v1 offset0:{i} offset1:{i}')
    a.lines = a.lines[:-8]
    for i in range(16):
        a(f'ds_read_b32 v{20+i}, v1 offset:{128*i}')
    a('s_waitcnt lgkmcnt(0)')
    for st in (8, 4, 2, 1):
        for i in range(st):
            a(f'v_add_f32 v{20+i}, v{20+i}, v{20+i+st}')
    bf16_round(a, 20, 20)
    a('s_cmp_ge_u32 s3, 54\ns_cselect_b32 s4, 54, 0\ns_sub_u32 s4, s3, s4\ns_sub_u32 s4, s4, 18\ns_cmp_lt_u32 s4, 18\ns_cselect_b32 s4, 1.0, 0')
    a('v_add_f32 v20, s4, v20')
    bf16_round(a, 20, 20)
    a(';MID')
    a('s_lshl_b32 s4, s3, 7\nv_add_u32 v1, s4, v1')
    a(f'global_store_dword v1, v20, s[6:7] offset:{MOD_OFF}')
    a('K1_END:\ns_endpgm')

    a('K1_LN:')
    a('s_load_dwordx2 s[8:9], s[0:1], 0')
    a(f's_sub_u32 s3, s2, {N_KGEN}')
    a('v_lshrrev_b32 v1, 4, v0\nv_mul_u32_u24 v1, 1152, v1\nv_and_b32 v2, 15, v0\nv_lshlrev_b32 v3, 3, v2\nv_add_u32 v1, v1, v3')
    a(f's_mul_i32 s4, s3, {16*1152}\nv_add_u32 v1, s4, v1')
    a('s_waitcnt lgkmcnt(0)')
    a(';MID 0')
    for i in range(9):
        a(f'global_load_dwordx2 {vr(8+2*i,2)}, v1, s[8:9] offset:{128*i}')
    a('v_lshlrev_b32 v2, 8, v2\nv_bfe_u32 v3, v0, 4, 2\nv_lshlrev_b32 v3, 6, v3\nv_add_u32 v2, v2, v3\nv_lshrrev_b32 v3, 6, v0\nv_lshlrev_b32 v3, 4, v3\nv_add_u32 v2, v2, v3')
    a.srd(12, 6, 2048*576*4, off=XT_OFF)
    a(f's_mul_i32 s5, s3, 36864')
    a('s_mov_b32 s17, 0xffff0000')
    X = 28
    for i in range(9):
        a(f's_waitcnt vmcnt({8-i})')
        for h in range(2):
            w = 8+2*i+h
            a(f'v_lshlrev_b32 v{X+4*i+2*h}, 16, v{w}\nv_and_b32 v{X+4*i+2*h+1}, s17, v{w}')
        if i == 0:
            a(f'v_pk_add_f32 v[4:5], {vr(X,2)}, {vr(X+2,2)}')
        else:
            a(f'v_pk_add_f32 v[4:5], v[4:5], {vr(X+4*i,2)}\nv_pk_add_f32 v[4:5], v[4:5], {vr(X+4*i+2,2)}')
    a(';MID')
    a('v_add_f32 v4, v4, v5')
    for sh in (8, 4, 2, 1):
        a(f'v_add_f32_dpp v4, v4, v4 row_ror:{sh} row_mask:0xf bank_mask:0xf')
    a(f'v_mul_f32 v4, {f2u(1/576)}, v4')
    D = 64
    for i in range(18):
        a(f'v_pk_add_f32 {vr(D+2*i,2)}, {vr(X+2*i,2)}, v[4:5] op_sel_hi:[1,0] neg_lo:[0,1] neg_hi:[0,1]')
        if i == 0: a(f'v_pk_mul_f32 v[6:7], {vr(D,2)}, {vr(D,2)}')
        else: a(f'v_pk_fma_f32 v[6:7], {vr(D+2*i,2)}, {vr(D+2*i,2)}, v[6:7]')
    a('v_add_f32 v6, v6, v7')
    for sh in (8, 4, 2, 1):
        a(f'v_add_f32_dpp v6, v6, v6 row_ror:{sh} row_mask:0xf bank_mask:0xf')
    a(f'v_mul_f32 v6, {f2u(1/576)}, v6')
    bf16_round(a, 6, 6)
    a(f'v_add_f32 v6, {f2u(1e-5)}, v6')
    bf16_round(a, 6, 6)
    a('v_sqrt_f32 v6, v6')
    bf16_round(a, 6, 6)
    a('v_rcp_f32 v6, v6')
    bf16_round(a, 5, 4)
    a('v_sub_f32 v4, v4, v5\nv_mul_f32 v4, v4, v6')
    for i in range(9):
        for h in range(2):
            k = 2*i+h
            a(f'v_pk_fma_f32 {vr(D+2*k,2)}, {vr(D+2*k,2)}, v[6:7], v[4:5] op_sel_hi:[1,0,0]')
        for j in range(4):
            a(f'v_cvt_pk_bf16_f32 v{X+4*i+j}, v{X+4*i+j}, v{D+4*i+j}')
    for i in range(9):
        b = X+4*i
        a(f'v_permlane32_swap_b32 v{b}, v{b+2}\nv_permlane32_swap_b32 v{b+1}, v{b+3}')
    a(';MID')
    for i in range(9):
        b = X+4*i
        a(f'v_permlane16_swap_b32 v{b}, v{b+1}\nv_permlane16_swap_b32 v{b+2}, v{b+3}')
        a(f'buffer_store_dwordx4 {vr(b,4)}, v2, s[12:15], s5 offen')
        if i < 8: a('s_add_u32 s5, s5, 4096')
    a(';MID')
    a('s_endpgm')

    a('K1_KGEN:')
    a('s_load_dwordx16 s[8:23], s[0:1], 8')
    a('s_lshl_b32 s3, s2, 10\nv_lshlrev_b32 v1, 2, v0\nv_add_u32 v1, s3, v1')
    a('v_lshrrev_b32 v3, 6, v0\ns_lshl_b32 s3, s2, 2\nv_add_u32 v3, s3, v3')
    a('v_lshlrev_b32 v2, 1, v3')
    a('s_waitcnt lgkmcnt(0)')
    a(';MID 0')
    a('global_load_ushort v14, v2, s[20:21]\nglobal_load_ushort v15, v2, s[22:23]')
    for i in range(6):
        a(f'global_load_dword v{8+i}, v1, s[{8+2*i}:{9+2*i}]')
    a('v_lshrrev_b32 v6, 6, v0\nv_mul_u32_u24 v6, 8448, v6\nv_and_b32 v4, 63, v0\nv_lshl_add_u32 v4, v4, 3, v6')
    a('v_and_b32 v7, 15, v0\nv_mul_u32_u24 v5, 528, v7\nv_add_u32 v5, v5, v6\nv_bfe_u32 v6, v0, 4, 2\nv_lshl_add_u32 v5, v6, 4, v5')
    a('v_mul_u32_u24 v3, 1536, v3')
    a('v_lshrrev_b32 v100, 1, v6\nv_lshlrev_b32 v100, 8, v100\nv_and_b32 v101, 1, v6\nv_lshl_add_u32 v100, v101, 3, v100\nv_lshl_add_u32 v100, v7, 4, v100\nv_add_u32 v100, v100, v3')
    a('v_lshrrev_b32 v101, 1, v6\nv_sub_u32 v102, 3, v101\nv_lshlrev_b32 v102, v102, v7\nv_lshl_add_u32 v102, v6, 7, v102\nv_add_u32 v102, v102, v3')
    a('v_mul_u32_u24 v101, 60, v101\nv_add_u32 v101, v101, v102')
    a('v_lshlrev_b32 v103, 5, v7\nv_lshl_add_u32 v103, v6, 3, v103\nv_add_u32 v103, v103, v3')
    a('s_mov_b32 s24, 0xffff0000')
    a(f's_mov_b32 s25, {LOG2E}\ns_mov_b32 s26, {INV2PI}')
    a('s_waitcnt vmcnt(6)')
    a('v_lshlrev_b32 v14, 16, v14\nv_mul_f32 v14, s25, v14\nv_exp_f32 v14, v14')
    bf16_round(a, 14, 14)
    a('v_lshlrev_b32 v15, 16, v15\nv_and_b32 v16, 63, v0\nv_cmp_eq_u32 vcc, 0, v16\nv_cndmask_b32 v88, 0, v15, vcc\nv_mov_b32 v89, 0\nv_mov_b32 v90, 0\nv_mov_b32 v91, 0')
    a('v_mul_f32 v16, s25, v14\nv_mul_f32 v17, s26, v14')
    a('s_waitcnt vmcnt(0)')
    a(';MID')
    for i in range(6):
        a(f'v_lshlrev_b32 v{18+2*i}, 16, v{8+i}\nv_and_b32 v{19+2*i}, s24, v{8+i}')
    a('v_pk_mul_f32 v[18:19], v[18:19], v[16:17] op_sel_hi:[1,0]')
    a('v_pk_mul_f32 v[20:21], v[20:21], v[16:17] op_sel:[0,1] op_sel_hi:[1,1]')
    a('v_pk_mul_f32 v[22:23], v[22:23], v[14:15] op_sel_hi:[1,0]')
    a('v_pk_mul_f32 v[24:25], v[24:25], v[14:15] op_sel_hi:[1,0]')
    T0, T1 = 8, 10
    def cmul(d, x, y):
        a(f'v_pk_mul_f32 {vr(T0,2)}, {vr(x+2,2)}, {vr(y+2,2)}')
        a(f'v_pk_mul_f32 {vr(T1,2)}, {vr(x+2,2)}, {vr(y,2)}')
        a(f'v_pk_fma_f32 {vr(d+2,2)}, {vr(x,2)}, {vr(y+2,2)}, {vr(T1,2)}')
        a(f'v_pk_fma_f32 {vr(d,2)}, {vr(x,2)}, {vr(y,2)}, {vr(T0,2)} neg_lo:[0,0,1] neg_hi:[0,0,1]')
    CV = [12, 16]
    cnt = [0]
    def emit(x, row, neg=False):
        t = (12, 14)[cnt[0] & 1]; cnt[0] += 1
        n = '-' if neg else ''
        a(f'v_cvt_pk_bf16_f32 v{t}, v{x}, v{x+1}')
        a(f'v_cvt_pk_bf16_f32 v{t+1}, {n}v{x+2}, {n}v{x+3}')
        a(f'ds_write_b64 v4, {vr(t,2)} offset:{row*528}')
    W = 30; P1 = 34; E8 = 38; Q1 = 42; R = 46; P2 = 22; P4 = 26; Q = 50
    cmul(W, 22, 26)
    def cexp(d, scale):
        if scale == 1.0:
            a(f'v_exp_f32 v{T0}, v18\nv_exp_f32 v{T0+1}, v19\nv_fract_f32 v{T1}, v20\nv_fract_f32 v{T1+1}, v21')
        else:
            a(f's_mov_b32 s27, {f2u(scale)}')
            a(f'v_mul_f32 v{T0}, s27, v18\nv_mul_f32 v{T0+1}, s27, v19\nv_mul_f32 v{T1}, s27, v20\nv_mul_f32 v{T1+1}, s27, v21')
            a(f'v_exp_f32 v{T0}, v{T0}\nv_exp_f32 v{T0+1}, v{T0+1}\nv_fract_f32 v{T1}, v{T1}\nv_fract_f32 v{T1+1}, v{T1+1}')
        a(f'v_cos_f32 v{d}, v{T1}\nv_cos_f32 v{d+1}, v{T1+1}\nv_sin_f32 v{d+2}, v{T1}\nv_sin_f32 v{d+3}, v{T1+1}')
        a(f'v_pk_mul_f32 {vr(d,2)}, {vr(d,2)}, {vr(T0,2)}\nv_pk_mul_f32 {vr(d+2,2)}, {vr(d+2,2)}, {vr(T0,2)}')
    cexp(E8, 8.0); cexp(P1, 1.0); cexp(Q1, 128.0)
    VF = 56
    UF = 104
    a(';MID')
    for b in range(16):
        emit(W, b, neg=True)
        if b < 15: cmul(W, W, E8)
    for kk in range(8):
        a(f'ds_read_b128 {vr(VF+4*kk,4)}, v5 offset:{64*kk}')
    def readU():
        for kk in range(8):
            a(f'ds_read_b128 {vr(UF+4*kk,4)}, v5 offset:{64*kk}')
    def mm(acc, swap, first_zero):
        for kk in range(8):
            A, B = (VF+4*kk, UF+4*kk) if swap else (UF+4*kk, VF+4*kk)
            c = '0' if (kk == 0 and first_zero) else vr(acc, 4)
            a(f'v_mfma_f32_16x16x32_bf16 {vr(acc,4)}, {vr(A,4)}, {vr(B,4)}, {c}')
    a(';MID')
    a('v_mov_b32 v12, 0x3f803f80\nv_mov_b32 v13, 0\nds_write_b64 v4, v[12:13]'); cnt[0] = 1
    emit(P1, 1)
    cmul(P2, P1, P1); emit(P2, 2)
    cmul(R, P2, P1); emit(R, 3)
    cmul(P4, R, P1); emit(P4, 4)
    cmul(R, P4, P1); emit(R, 5)
    cmul(R, R, P1); emit(R, 6)
    cmul(R, R, P1); emit(R, 7)
    emit(Q1, 8)
    cmul(R, Q1, P1); emit(R, 9)
    for c in range(2, 8):
        cmul(R, R, P1); emit(R, 8+c)
    readU()
    cmul(Q, Q1, Q1)
    for aa in (2, 3):
        emit(Q, 4*(aa-2))
        cmul(R, Q, P2); emit(R, 4*(aa-2)+1)
        cmul(R, R, P2); emit(R, 4*(aa-2)+2)
        cmul(R, R, P2); emit(R, 4*(aa-2)+3)
        cmul(Q, Q, Q1)
        if aa == 2:
            a('s_waitcnt lgkmcnt(4)')
            mm(88, False, False)
    for aa in range(4, 8):
        emit(Q, 8+2*(aa-4))
        cmul(R, Q, P4); emit(R, 8+2*(aa-4)+1)
        cmul(Q, Q, Q1)
    readU()
    for aa in range(8, 17):
        emit(Q, aa-8)
        if aa < 16: cmul(Q, Q, Q1)
        if aa == 11:
            a('s_waitcnt lgkmcnt(4)')
            mm(92, False, True)
    readU()
    a('v_cvt_pk_bf16_f32 v88, v88, v89\nv_cvt_pk_bf16_f32 v89, v90, v91')
    a(f's_add_u32 s6, s6, {KT_OFF}\ns_addc_u32 s7, s7, 0')
    a('global_store_dwordx2 v100, v[88:89], s[6:7]')
    a('v_cvt_pk_bf16_f32 v92, v92, v93\nv_cvt_pk_bf16_f32 v93, v94, v95')
    a('global_store_dword v102, v92, s[6:7] offset:512\nglobal_store_dword v101, v93, s[6:7] offset:516')
    a('s_waitcnt lgkmcnt(0)')
    mm(96, True, True)
    a('v_cvt_pk_bf16_f32 v96, v96, v97\nv_cvt_pk_bf16_f32 v97, v98, v99')
    a('global_store_dwordx2 v103, v[96:97], s[6:7] offset:1024')
    a(';MID')
    a('s_endpgm')
    a.end_kernel(name, 136, sgpr=40)


def gen_k2(a, wpf=2, wdpf=True):
    name = 'k2_kernel'
    HB = 4608
    CS = 4160
    WB = HB + 4*CS
    a.launch(name, 256 if wpf else 144, 256, lds=4*WB)
    a.kernel(name)
    a('s_cmp_ge_u32 s2, 144\ns_cbranch_scc1 K2_SIDE')
    a('s_load_dwordx2 s[6:7], s[0:1], 136')
    a('v_lshrrev_b32 v1, 6, v0')
    a('v_readfirstlane_b32 s3, v1')
    a('v_and_b32 v2, 63, v0\nv_and_b32 v3, 15, v0\nv_bfe_u32 v4, v0, 4, 2')
    a('s_lshl_b32 s4, s2, 2\ns_add_u32 s4, s4, s3')
    a(f's_mul_i32 s5, s3, {WB}')
    a('v_mul_u32_u24 v5, 36864, v3\nv_lshl_add_u32 v5, v4, 4, v5')
    a('v_lshlrev_b32 v6, 3, v2\nv_lshlrev_b32 v7, 2, v2')
    a('s_lshl_b32 s16, s4, 6\ns_mul_i32 s17, s4, 1536\ns_lshl_b32 s18, s4, 2')
    a('s_waitcnt lgkmcnt(0)')
    a(';MID')
    a('s_add_u32 s20, s6, s18\ns_addc_u32 s21, s7, 0')
    a(f's_load_dword s22, s[20:21], {MOD_OFF}\ns_load_dword s23, s[20:21], {MOD_OFF+576*4}\ns_load_dword s24, s[20:21], {MOD_OFF+2*576*4}')
    a.srd(8, 6, 576*1536, off=KT_OFF)
    a.srd(12, 6, 2048*576*4, off=XT_OFF)
    a('buffer_load_dwordx2 v[8:9], v6, s[8:11], s17 offen')
    a('buffer_load_dwordx2 v[10:11], v7, s[8:11], s17 offen offset:512')
    a('buffer_load_dwordx2 v[12:13], v7, s[8:11], s17 offen offset:768')
    a('buffer_load_dwordx2 v[14:15], v7, s[8:11], s17 offen offset:1024')
    X = 32
    for u in range(8):
        a(f'buffer_load_dwordx4 {vr(X+4*u,4)}, v5, s[12:15], s16 offen')
        if u < 7: a(f's_add_u32 s16, s16, {16*36864}')
    a('v_mov_b32 v16, 0\nv_mov_b32 v17, 0')
    a('v_add_u32 v6, s5, v6')
    a('ds_write_b64 v6, v[16:17] offset:4096')
    a(f'v_lshrrev_b32 v18, 2, v3\nv_mul_u32_u24 v18, {CS}, v18\nv_and_b32 v19, 3, v3\nv_lshl_add_u32 v18, v19, 3, v18\nv_add_u32 v18, s5, v18')
    a(f'ds_write_b64 v18, v[16:17] offset:{HB}')
    a('v_lshlrev_b32 v20, 4, v2\nv_add_u32 v20, s5, v20')
    a('v_lshlrev_b32 v21, 5, v2\nv_add_u32 v21, s5, v21')
    a('v_lshlrev_b32 v24, 5, v3\nv_sub_u32 v24, s5, v24\nv_lshlrev_b32 v25, 3, v4\nv_sub_u32 v22, v24, v25\nv_add_u32 v22, 504, v22')
    a('v_lshl_add_u32 v23, v4, 4, v24\nv_add_u32 v23, 480, v23')
    a(f'v_sub_u32 v25, 3, v3\nv_and_b32 v25, 3, v25\nv_mul_u32_u24 v26, {CS+2}, v25\nv_lshl_add_u32 v26, v3, 1, v26\nv_lshl_add_u32 v26, v4, 4, v26\nv_add_u32 v26, s5, v26\nv_add_u32 v26, {HB+2}, v26')
    a('s_mov_b32 s25, 0x01000100\ns_mov_b32 s26, 0x03020302\ns_mov_b32 s27, 0xffff0000')
    C0 = HB + 32
    a('s_waitcnt vmcnt(8)')
    a(';MID')
    a(f'ds_write_b64 v6, v[8:9] offset:{C0}')
    a('v_perm_b32 v16, v10, v10, s25\nv_alignbit_b32 v17, v11, v10, 16')
    a(f'ds_write_b64 v6, v[16:17] offset:{C0+512}')
    a('v_perm_b32 v64, v12, v12, s25\nv_mov_b32 v65, v12\nv_perm_b32 v66, v12, v12, s26\nv_perm_b32 v67, v13, v13, s25')
    a(f'ds_write_b128 v20, v[64:67] offset:{C0+1024}')
    a('v_perm_b32 v68, v14, v14, s25\nv_perm_b32 v69, v14, v14, s25\nv_mov_b32 v70, v14\nv_perm_b32 v71, v14, v14, s26')
    a('v_perm_b32 v72, v14, v14, s26\nv_perm_b32 v73, v14, v14, s26\nv_perm_b32 v74, v15, v15, s25\nv_perm_b32 v75, v15, v15, s25')
    a(f'ds_write_b128 v21, v[68:71] offset:{C0+2048}\nds_write_b128 v21, v[72:75] offset:{C0+2048+16}')
    for t in range(4):
        b = 80 + 8*t
        a(f'ds_read_b64 {vr(b+2,2)}, v20 offset:{C0+1024*t-8}\nds_read_b128 {vr(b+4,4)}, v20 offset:{C0+1024*t}')
    a('s_waitcnt lgkmcnt(0)')
    a('v_mov_b32 v28, s23')
    a('v_mov_b32 v30, s22')
    for t in range(4):
        b = 80 + 8*t; o = 112 + 12*(t & 1)
        for j in range(4): a(f'v_alignbit_b32 v{o+j}, v{b+4+j}, v{b+3+j}, 16')
        a(f'ds_write_b128 v20, {vr(o,4)} offset:{C0+CS+1024*t}')
        a(f'v_pk_mov_b32 {vr(o+4,2)}, {vr(b+2,2)}, {vr(b+4,2)} op_sel:[1,0]\nv_pk_mov_b32 {vr(o+6,2)}, {vr(b+4,2)}, {vr(b+6,2)} op_sel:[1,0]')
        a(f'ds_write_b128 v20, {vr(o+4,4)} offset:{C0+2*CS+1024*t}')
        for j in range(4): a(f'v_alignbit_b32 v{o+8+j}, v{b+3+j}, v{b+2+j}, 16')
        a(f'ds_write_b128 v20, {vr(o+8,4)} offset:{C0+3*CS+1024*t}')
    a(';MID')
    for u in range(8):
        a(f's_waitcnt vmcnt({7-u})')
        t = 64 + 8*(u & 1)
        for j in range(4): a(f'v_and_b32 v{t+j}, s27, v{X+4*u+j}')
        a(f'v_pk_fma_f32 {vr(t,2)}, {vr(t,2)}, v[28:29], v[30:31] op_sel_hi:[1,0,0]\nv_pk_fma_f32 {vr(t+2,2)}, {vr(t+2,2)}, v[28:29], v[30:31] op_sel_hi:[1,0,0]')
        a(f'v_cvt_pk_bf16_f32 v{t+4}, v{t+3}, v{t+2}\nv_cvt_pk_bf16_f32 v{t+5}, v{t+1}, v{t}')
        a(f'ds_write_b64 v22, {vr(t+4,2)} offset:{(7-u)*512}')
    ACC = 64
    FR = [96, 160]
    def reads(i):
        f = FR[i & 1]; L = []
        for k in range(8):
            L.append(f'ds_read_b128 {vr(f+32+4*k,4)}, v23 offset:{64*i+512*(7-k)}')
            L.append(f'ds_read_b64 {vr(f+4*k,2)}, v26 offset:{64*i+512*k}')
            L.append(f'ds_read_b64 {vr(f+4*k+2,2)}, v26 offset:{64*i+512*k+8}')
        return L
    a(';MID')
    for s in reads(0): a(s)
    a('v_mul_u32_u24 v5, 18432, v3\nv_lshl_add_u32 v5, v4, 3, v5')
    a.srd(12, 6, 2048*576*2, off=X1T_OFF)
    a('s_lshl_b32 s16, s4, 5')
    for i in range(8):
        a('s_waitcnt lgkmcnt(0)')
        if i == 0: a(';MID')
        f = FR[i & 1]
        fill = reads(i+1) if i < 7 else []
        if i == 0: fill = fill + [f'v_lshlrev_b32 v{X+j}, 16, v{X+j}' for j in range(12)]
        if i == 1: fill = fill + [f'v_lshlrev_b32 v{X+j}, 16, v{X+j}' for j in range(12, 24)]
        if i == 2: fill = fill + [f'v_lshlrev_b32 v{X+j}, 16, v{X+j}' for j in range(24, 32)]
        first = set()
        for u in range(8):
            for al in range(u+1):
                be = u - al
                c = '0' if (i == 0 and al == 0) else vr(ACC+4*u, 4)
                a(f'v_mfma_f32_16x16x32_bf16 {vr(ACC+4*u,4)}, {vr(f+4*al,4)}, {vr(f+32+4*be,4)}, {c}')
                if fill: a(fill.pop(0))
                if i == 7 and fill: a(fill.pop(0))
            if i == 7 and u >= 2:
                v = u - 2
                fill += epi2(v, ACC, X)
    a(';MID')
    for v in (6, 7): fill += epi2(v, ACC, X)
    for s in fill: a(s)
    a(';MID')
    a('K2_END:\ns_endpgm')
    a('K2_SIDE:')
    if wpf:
        a('s_cmp_ge_u32 s2, 256\ns_cbranch_scc1 K2_END2')
        a('s_load_dwordx4 s[4:7], s[0:1], 80\ns_load_dwordx2 s[8:9], s[0:1], 96')
        a('v_lshrrev_b32 v1, 6, v0\nv_readfirstlane_b32 s3, v1\nv_and_b32 v0, 63, v0')
        NL = 18 if wpf == 3 else 9
        R = 64 // NL
        NI = -(-576 // (R*56))
        a(f'v_mul_u32_u24 v1, {65536//NL+1}, v0\nv_lshrrev_b32 v1, 16, v1\nv_mul_u32_u24 v2, {NL}, v1\nv_sub_u32 v2, v0, v2\nv_mul_u32_u24 v1, 9216, v1\nv_lshl_add_u32 v1, v2, 7, v1')
        a('s_sub_u32 s10, s2, 144\ns_lshr_b32 s11, s10, 3\ns_lshl_b32 s11, s11, 2\ns_add_u32 s11, s11, s3')
        a(f's_mul_i32 s12, s11, {NI*R*9216}')
        if wpf == 3: a('s_bfe_u32 s13, s2, 0x20001\ns_mul_i32 s13, s13, 2304')
        else: a('s_and_b32 s13, s2, 7\ns_mul_i32 s13, s13, 1152')
        a('s_add_u32 s12, s12, s13')
        a('s_lshl_b32 s14, s10, 2\ns_add_u32 s14, s14, s3\ns_mul_i32 s14, s14, 16384\nv_lshlrev_b32 v2, 7, v0')
        a('s_waitcnt lgkmcnt(0)')
        a.srd(16, 4, 576*9216); a.srd(20, 6, 576*9216); a.srd(24, 8, 4608*1152)
        for c in range(NI):
            a(f'buffer_load_dword v{4+2*c}, v1, s[16:19], s12 offen\nbuffer_load_dword v{5+2*c}, v1, s[20:23], s12 offen\ns_add_u32 s12, s12, {R*9216}')
        if wdpf:
            a('buffer_load_dword v30, v2, s[24:27], s14 offen\ns_add_u32 s14, s14, 8192\nbuffer_load_dword v31, v2, s[24:27], s14 offen')
        a('s_waitcnt vmcnt(0)')
    a('K2_END2:\ns_endpgm')
    a.end_kernel(name, 224, sgpr=40)

def epi2(u, ACC, X):
    L = []
    for j in range(4): L.append(f'v_fma_f32 v{X+4*u+j}, v{ACC+4*u+j}, s24, v{X+4*u+j}')
    L.append(f'v_cvt_pk_bf16_f32 v{X+4*u}, v{X+4*u}, v{X+4*u+1}')
    L.append(f'v_cvt_pk_bf16_f32 v{X+4*u+1}, v{X+4*u+2}, v{X+4*u+3}')
    L.append(f'buffer_store_dwordx2 {vr(X+4*u,2)}, v5, s[12:15], s16 offen')
    if u < 7: L.append(f's_add_u32 s16, s16, {16*18432}')
    return L


def gen_k3(a, pack=False):
    name = 'k3_kernel'
    a.launch(name, 244 if pack else 128, 576, lds=86016 if pack else 18432+1152)
    a.kernel(name)
    a('s_cmp_ge_u32 s2, 128\ns_cbranch_scc1 ' + ('K3_SIDE' if pack else 'K3_END'))
    a('s_load_dwordx2 s[6:7], s[0:1], 136')
    a('v_lshrrev_b32 v1, 6, v0')
    a('v_readfirstlane_b32 s3, v1')
    a('v_and_b32 v2, 63, v0\nv_lshlrev_b32 v3, 4, v2')
    a('v_bfe_u32 v4, v0, 4, 2\nv_lshlrev_b32 v4, 4, v4\nv_lshl_add_u32 v4, v1, 8, v4')
    a('s_lshl_b32 s4, s3, 11\ns_mov_b32 m0, s4')
    a('s_mul_i32 s5, s2, 18432\ns_add_u32 s5, s5, s4')
    a('v_and_b32 v66, 15, v0\nv_lshlrev_b32 v66, 2, v66\nv_bfe_u32 v5, v0, 5, 1\nv_lshl_add_u32 v5, v5, 6, v66\nv_lshl_add_u32 v5, v1, 7, v5')
    a('v_lshl_add_u32 v2, v2, 3, s4')
    a('s_waitcnt lgkmcnt(0)')
    a(';MID')
    a.srd(8, 6, 2048*576*2, off=X1T_OFF)
    a('buffer_load_dwordx4 v3, s[8:11], s5 offen lds\nbuffer_load_dwordx4 v3, s[8:11], s5 offen offset:1024 lds')
    a(f's_add_u32 s12, s6, {MOD_OFF + 3*576*4}\ns_addc_u32 s13, s7, 0')
    for q in range(4):
        a(f'global_load_dwordx4 {vr(32+4*q,4)}, v4, s[12:13] offset:{64*q}')
        a(f'global_load_dwordx4 {vr(48+4*q,4)}, v4, s[12:13] offset:{576*4+64*q}')
    a.srd(8, 6, 2048*576*2, off=H2F_OFF)
    a('s_mov_b32 s17, 0xffff0000')
    a(';MID')
    a('s_waitcnt vmcnt(8)')
    a(';MID')
    for q in range(4):
        a(f'ds_read_b64_tr_b16 {vr(8+2*q,2)}, v2 offset:{512*q}')
    for q in range(4):
        a(f's_waitcnt lgkmcnt({3-q})')
        for h in range(2):
            a(f'v_lshlrev_b32 v{16+4*q+2*h}, 16, v{8+2*q+h}\nv_and_b32 v{17+4*q+2*h}, s17, v{8+2*q+h}')
        for h in range(2):
            x = vr(16+4*q+2*h, 2)
            if q == 0 and h == 0:
                a(f'v_pk_mul_f32 v[64:65], {x}, {x}')
            elif q == 0:
                a(f'v_pk_add_f32 v[6:7], {vr(16,2)}, {x}\nv_pk_fma_f32 v[64:65], {x}, {x}, v[64:65]')
            else:
                a(f'v_pk_add_f32 v[6:7], v[6:7], {x}\nv_pk_fma_f32 v[64:65], {x}, {x}, v[64:65]')
    a('v_add_f32 v6, v6, v7\nv_add_f32 v64, v64, v65')
    a('v_permlane32_swap_b32 v6, v64\nv_add_f32 v6, v6, v64\nv_mov_b32 v7, v6\nv_permlane16_swap_b32 v6, v7\nv_add_f32 v6, v6, v7')
    a('ds_write_b32 v5, v6 offset:18432')
    a('s_waitcnt lgkmcnt(0)\ns_barrier')
    a(';MID')
    a('v_add_u32 v66, 18432, v66')
    for w in range(8):
        a(f'ds_read2_b32 {vr(68+2*w,2)}, v66 offset0:{32*w} offset1:{32*w+16}')
    a('v_add_u32 v66, 1024, v66\nds_read2_b32 v[6:7], v66 offset0:0 offset1:16')
    a('s_waitcnt lgkmcnt(1)')
    for st in (4, 2, 1):
        for w in range(st):
            a(f'v_pk_add_f32 {vr(68+2*w,2)}, {vr(68+2*w,2)}, {vr(68+2*(w+st),2)}')
    a('s_waitcnt lgkmcnt(0)')
    a('v_pk_add_f32 v[6:7], v[6:7], v[68:69]')
    a(f'v_mul_f32 v6, {f2u(1/576)}, v6\nv_mul_f32 v7, {f2u(1/576)}, v7')
    a('v_fma_f32 v7, -v6, v6, v7\nv_max_f32 v7, 0, v7')
    bf16_round(a, 7, 7)
    a(f'v_add_f32 v7, {f2u(1e-5)}, v7')
    bf16_round(a, 7, 7)
    a('v_sqrt_f32 v7, v7')
    bf16_round(a, 7, 7)
    a('v_rcp_f32 v7, v7')
    bf16_round(a, 6, 6)
    a('v_mul_f32 v6, v6, v7')
    a(';MID')
    a('s_waitcnt vmcnt(0)')
    a(';MID')
    for k in range(8):
        x = vr(16+2*k, 2)
        a(f'v_pk_fma_f32 {x}, {x}, v[6:7], v[6:7] op_sel:[0,1,0] op_sel_hi:[1,1,0] neg_lo:[0,0,1] neg_hi:[0,0,1]')
    for k in range(8):
        x = vr(16+2*k, 2)
        a(f'v_pk_fma_f32 {x}, {x}, {vr(48+2*k,2)}, {vr(32+2*k,2)}')
    for k in range(8):
        a(f'v_cvt_pk_bf16_f32 v{8+k}, v{16+2*k}, v{17+2*k}')
    a('buffer_store_dwordx4 v[8:11], v3, s[8:11], s5 offen\nbuffer_store_dwordx4 v[12:15], v3, s[8:11], s5 offen offset:1024')
    a(';MID')
    a('K3_END:\ns_endpgm')
    if pack:
        a('K3_SIDE:')
        gen_pack(a)
    a.end_kernel(name, 84, sgpr=40)


class VmTrack:
    def __init__(self): self.n = 0; self.idx = {}; self.done = -1
    def issue(self, tag=None):
        if tag is not None: self.idx[tag] = self.n
        self.n += 1
        assert self.n - 1 - self.done <= 63, ('too many outstanding', tag)
    def wait_for(self, tags):
        k = max(self.idx[t] for t in tags)
        if k <= self.done: return None
        self.done = k
        c = self.n - 1 - k
        assert c <= 63
        return f's_waitcnt vmcnt({c})'

def gen_k4(a, store_flags='sc1', D=4, pre_steps=2, spacing=5, look2=2.0, grp=3, xmap=2, wpair=False, maxv=2):
    name = 'k4_kernel'
    NSLOT = 20
    a.launch(name, 256, 256, lds=NSLOT*8192)
    a.kernel(name)
    a('s_load_dwordx4 s[4:7], s[0:1], 80')
    a('s_load_dwordx2 s[8:9], s[0:1], 136')
    a('s_cmp_ge_u32 s2, 256\ns_cbranch_scc1 K4_END')
    a('v_lshrrev_b32 v1, 6, v0')
    a('v_readfirstlane_b32 s3, v1')
    if xmap == 3:
        a('s_and_b32 s10, s2, 1\ns_lshl_b32 s10, s10, 2\ns_bfe_u32 s11, s2, 0x20003\ns_add_u32 s10, s10, s11')
        a('s_and_b32 s11, s2, 6\ns_bfe_u32 s12, s2, 0x10005\ns_add_u32 s11, s11, s12')
    elif xmap == 2:
        a('s_bfe_u32 s10, s2, 0x30003\ns_and_b32 s11, s2, 7')
    elif xmap == 4:
        a('s_and_b32 s10, s2, 3\ns_lshl_b32 s10, s10, 1\ns_bfe_u32 s11, s2, 0x10003\ns_add_u32 s10, s10, s11')
        a('s_and_b32 s11, s2, 4\ns_bfe_u32 s12, s2, 0x20004\ns_add_u32 s11, s11, s12')
    a('s_lshr_b32 s12, s2, 6')
    a('s_mul_i32 s13, s11, 9\ns_lshl_b32 s14, s12, 1\ns_add_u32 s14, s14, s13')
    a('s_add_u32 s13, s13, 8')
    a('s_lshl_b32 s15, s10, 4\ns_lshl_b32 s16, s3, 2\ns_add_u32 s15, s15, s16')
    a('s_mul_i32 s40, s15, 18432')
    a('s_lshl_b32 s44, s14, 7')
    a('s_lshl_b32 s46, s3, 11')
    H = 8; WF = 40; ACC = 64; NB = 6
    HV = [1, ACC+162, ACC+163, ACC+164]
    a('v_and_b32 v0, 63, v0\nv_lshlrev_b32 v1, 4, v0')
    for m in range(1, 4): a(f'v_add_u32 v{HV[m]}, {m*18432}, v1')
    a('v_lshrrev_b32 v2, 3, v0\nv_and_b32 v3, 6, v2\nv_and_b32 v4, 7, v0\nv_xor_b32 v3, v3, v4\nv_lshlrev_b32 v3, 4, v3')
    a('s_lshl_b32 s16, s3, 3\nv_add_u32 v2, s16, v2\nv_mul_u32_u24 v2, 9216, v2\nv_add_u32 v2, v2, v3')
    a(f's_mov_b32 s22, {576*9216}\ns_mov_b32 s23, 0x00020000\ns_mov_b32 s26, {576*9216+1024}\ns_mov_b32 s27, 0x00020000\ns_mov_b32 s30, {2048*576*2}\ns_mov_b32 s31, 0x00020000')
    a('s_mov_b32 m0, s46')
    a('s_waitcnt lgkmcnt(0)')
    a('s_mov_b32 s20, s4\ns_mov_b32 s21, s5\ns_sub_u32 s24, s6, 1024\ns_subb_u32 s25, s7, 0')
    a(f's_add_u32 s28, s8, {H2F_OFF}\ns_addc_u32 s29, s9, 0')
    vm = VmTrack()
    def hreg(m, kk):
        idx = kk*4 + m
        return f'a[{4*idx}:{4*idx+3}]' if idx < 64 else vr(H + 4*(idx-64), 4)
    units = []
    for k in range(18): units.append(dict(ph=1, k=k, size=8192))
    for ph in (2, 3):
        for u in range(9): units.append(dict(ph=ph, k=u, size=8192))
    for u in range(9): units.append(dict(ph=4, k=u, size=4096))
    pos = 0
    for u in units:
        if pos + u['size'] > NSLOT*8192: pos = 0
        u['lds'] = pos; pos += u['size']
    def dma_ops(ui):
        u = units[ui]; L = []
        if u['ph'] == 4:
            if u['k']: L.append(('s', f's_add_u32 s45, s45, {64*9216}'))
            L.append(('s', f's_add_u32 m0, s47, {u["lds"]}'))
            L.append(('v', f'buffer_load_dwordx4 v2, s[36:39], s45 offen lds', ('dma', ui)))
            return L
        vo = 'v2' if u['ph'] == 1 else 'v5'
        if ui:
            if u['k'] == 0: d = (128 - 17*32*9216) if u['ph'] == 2 else (64 - 8*64*9216)
            else: d = (32 if u['ph'] == 1 else 64)*9216
            L.append(('s', f's_add_u32 s44, s44, {d & 0xffffffff}'))
            L.append(('s', f's_add_u32 m0, s46, {u["lds"]}'))
        L.append(('v', f'buffer_load_dwordx4 {vo}, s[20:23], s44 offen lds', None))
        L.append(('v', f'buffer_load_dwordx4 {vo}, s[24:27], s44 offen offset:1024 lds', ('dma', ui)))
        return L
    def h_ops(kk):
        L = []
        if kk and kk % 4 == 0: L.append(('s', 's_add_u32 s40, s40, 4096'))
        for m in range(4):
            L.append(('v', f'buffer_load_dwordx4 {hreg(m,kk)}, v{HV[m]}, s[28:31], s40 offen offset:{(kk%4)*1024}', ('h', kk, m)))
        return L
    def emit_op(op):
        if op[0] == 'v': vm.issue(op[2])
        a(op[1])
    for k in range(pre_steps):
        for op in dma_ops(k) + h_ops(k): emit_op(op)
    a(f's_mul_i32 s41, s15, {144*1024}')
    a('s_lshl_b32 s16, s14, 11\ns_add_u32 s42, s41, s16')
    a('s_lshl_b32 s16, s13, 11\ns_add_u32 s43, s41, s16\ns_lshr_b32 s16, s12, 1\ns_lshl_b32 s16, s16, 10\ns_add_u32 s43, s43, s16\ns_and_b32 s16, s12, 1\ns_lshl_b32 s16, s16, 3\ns_add_u32 s43, s43, s16')
    a('s_lshl_b32 s45, s13, 7\ns_lshl_b32 s16, s12, 5\ns_add_u32 s45, s45, s16')
    a(f's_lshr_b32 s16, s3, 1\ns_mul_i32 s16, s16, {32*9216}\ns_add_u32 s45, s45, s16')
    a('s_lshl_b32 s47, s3, 10')
    a.srd(32, 8, 2048*4608*2, off=ACT_OFF)
    a('s_bitcmp1_b32 s3, 0\ns_cselect_b32 s36, s6, s4\ns_cselect_b32 s37, s7, s5')
    a(f's_mov_b32 s38, {576*9216}\ns_mov_b32 s39, 0x00020000')
    a('v_lshrrev_b32 v5, 2, v0\nv_lshrrev_b32 v3, 3, v0\nv_and_b32 v3, 2, v3\nv_and_b32 v4, 3, v0\nv_xor_b32 v3, v3, v4\nv_lshlrev_b32 v3, 4, v3')
    a('s_lshl_b32 s16, s3, 4\nv_add_u32 v5, s16, v5\nv_mul_u32_u24 v5, 9216, v5\nv_add_u32 v5, v5, v3')
    TR1 = [3, 4, 6, 7]
    t0, t1 = ACC+160, ACC+161
    a(f'v_bfe_u32 v{t0}, v0, 2, 3\nv_lshlrev_b32 v{t0}, 7, v{t0}\nv_and_b32 v{t1}, 3, v0\nv_lshl_add_u32 v{t0}, v{t1}, 3, v{t0}\nv_lshrrev_b32 v{t1}, 5, v0\nv_lshl_add_u32 v{t0}, v{t1}, 11, v{t0}\nv_bfe_u32 v{t1}, v0, 3, 2')
    for t in range(4):
        a(f'v_xor_b32 v{TR1[t]}, {t}, v{t1}\nv_lshl_add_u32 v{TR1[t]}, v{TR1[t]}, 5, v{t0}')
    frags = []
    for k in range(18):
        for t in range(4):
            for mat in range(2):
                frags.append(dict(unit=k, key=('p1', t), off=units[k]['lds'] + mat*1024, hs=4096, slot=t, mat=mat, kk=k))
    for ph, slots in ((2, (4, 5)), (3, (0, 1))):
        for k in range(18):
            ui = 18 + (ph-2)*9 + k//2
            for t in range(2):
                for mat in range(2):
                    frags.append(dict(unit=ui, key=('p2', t), off=units[ui]['lds'] + mat*1024 + (k & 1)*4096, hs=2048, slot=slots[t], mat=mat, kk=k))
    for k in range(18):
        ui = 36 + k//2
        for mat in range(2):
            frags.append(dict(unit=ui, key=('p4', 0), off=units[ui]['lds'] + (k & 1)*2048 + mat*1024, hs=512, slot=2, mat=mat, kk=k))
    NF = len(frags)
    areg = {('p1', t): TR1[t] for t in range(4)}
    abase = {k: 0 for k in areg}
    def addr_setup(key):
        if key == ('p2', 0):
            areg[('p2', 0)] = 3; areg[('p2', 1)] = 4; abase[('p2', 0)] = 0; abase[('p2', 1)] = 0
            return ['v_lshrrev_b32 v3, 2, v0', 'v_lshlrev_b32 v3, 6, v3', 'v_and_b32 v4, 3, v0', 'v_lshl_add_u32 v3, v4, 3, v3',
                    'v_bfe_u32 v4, v0, 4, 1', 'v_lshl_add_u32 v3, v4, 5, v3', 'v_xor_b32 v4, 32, v3']
        if key == ('p4', 0):
            areg[key] = 6; abase[key] = 0
            return ['v_lshlrev_b32 v6, 3, v0']
        return []
    def read_ops(j):
        f = frags[j]; L = []
        if f['key'] not in areg: L += [('a', s) for s in addr_setup(f['key'])]
        r = areg[f['key']]
        lo = f['off'] - abase[f['key']]
        if lo < 0 or lo + f['hs'] > 65535:
            nb = f['off'] if f['off'] >= 49152 else 0
            L.append(('a', f'v_add_u32 v{r}, {(nb - abase[f["key"]]) & 0xffffffff}, v{r}'))
            abase[f['key']] = nb; lo = f['off'] - nb
        b = WF + 4*(j % NB)
        L.append(('d', f'ds_read_b64_tr_b16 {vr(b,2)}, v{r} offset:{lo}'))
        L.append(('d', f'ds_read_b64_tr_b16 {vr(b+2,2)}, v{r} offset:{lo+f["hs"]}'))
        return L
    def acc(slot, mat, m): return ACC + 32*slot + 16*mat + 4*m
    def epi_pair(sa_, sb_, soff_reg, fragoff):
        L = []
        for m in range(4):
            for s in (sa_, sb_):
                g, u = acc(s, 0, m), acc(s, 1, m)
                for r in range(4): L.append(('a', f'v_max_f32 v{g+r}, 0, v{g+r}'))
                for r in range(4): L.append(('a', f'v_mul_f32 v{g+r}, v{g+r}, v{u+r}'))
            o = acc(sa_, 1, m); ga_, gb_ = acc(sa_, 0, m), acc(sb_, 0, m)
            L.append(('s', f's_add_u32 s19, s{soff_reg}, {m*144*1024 + fragoff*1024}'))
            L.append(('a', f'v_cvt_pk_bf16_f32 v{o}, v{ga_}, v{ga_+1}')); L.append(('a', f'v_cvt_pk_bf16_f32 v{o+1}, v{ga_+2}, v{ga_+3}'))
            L.append(('a', f'v_cvt_pk_bf16_f32 v{o+2}, v{gb_}, v{gb_+1}')); L.append(('a', f'v_cvt_pk_bf16_f32 v{o+3}, v{gb_+2}, v{gb_+3}'))
            L.append(('v', f'buffer_store_dwordx4 {vr(o,4)}, v1, s[32:35], s19 offen {store_flags}', None))
        return L
    def epi_single(s):
        L = []
        for m in range(4):
            g, u = acc(s, 0, m), acc(s, 1, m)
            for r in range(4): L.append(('a', f'v_max_f32 v{g+r}, 0, v{g+r}'))
            for r in range(4): L.append(('a', f'v_mul_f32 v{g+r}, v{g+r}, v{u+r}'))
            L.append(('s', f's_add_u32 s19, s43, {m*144*1024}'))
            L.append(('a', f'v_cvt_pk_bf16_f32 v{u}, v{g}, v{g+1}')); L.append(('a', f'v_cvt_pk_bf16_f32 v{u+1}, v{g+2}, v{g+3}'))
            L.append(('v', f'buffer_store_dwordx2 {vr(u,2)}, v1, s[32:35], s19 offen {store_flags}', None))
        return L
    groups = [[k] for k in range(18)]
    groups += [[18], [19], [20, 21]]
    rest = list(range(22, 36))
    while rest: groups.append(rest[:grp]); rest = rest[grp:]
    groups += [[36, 37, 38, 39], [40, 41, 42, 43, 44]]
    first_of = {g[0]: g for g in groups}
    published = set()
    last_read = {}
    for j, f in enumerate(frags): last_read[f['unit']] = j
    barrier_at = []
    loadq = []
    st = dict(h=pre_steps, dma=pre_steps, p4=False)
    fillq = []
    jcur = [0]
    def slot_free(ui):
        u = units[ui]
        for v in range(ui):
            w = units[v]
            if w['lds'] < u['lds'] + u['size'] and u['lds'] < w['lds'] + w['size']:
                if not any(b > last_read[v] for b in barrier_at): return False
        return True
    def refill():
        if loadq: return
        if st['h'] < 18:
            loadq.extend(dma_ops(st['dma']) + h_ops(st['h'])); st['dma'] += 1; st['h'] += 1
        elif st['dma'] < len(units) and slot_free(st['dma']):
            if units[st['dma']]['ph'] == 4 and not st['p4']:
                assert jcur[0] >= 141
                loadq.extend([('a', 'v_lshrrev_b32 v2, 1, v0'), ('a', 'v_mul_u32_u24 v2, 576, v2'), ('a', 'v_and_b32 v7, 1, v0'), ('a', 'v_add_lshl_u32 v2, v2, v7, 4')])
                st['p4'] = True
            loadq.extend(dma_ops(st['dma'])); st['dma'] += 1
    def force(tags):
        while not all(t in vm.idx for t in tags):
            refill(); emit_op(loadq.pop(0))
    def pre_count(j, m):
        n = 0
        if j >= NF: return 0
        if m == 0:
            if not (wpair and j % 2): n += 1
            if j + D < NF and frags[j+D]['unit'] not in published: n += 2
            if j < 144 and j % 8 == 0: n += 1
        return n
    def pre_emit(j, m):
        if m != 0: return
        if j < 144 and j % 8 == 0:
            tg = [('h', frags[j]['kk'], 3)]
            force(tg)
            w = vm.wait_for(tg)
            if w: a(w)
        if not (wpair and j % 2):
            need_upto = j + (1 if wpair else 0)
            issued_upto = min(j + D, NF) - 1
            a(f's_waitcnt lgkmcnt({2*max(0, issued_upto - need_upto)})')
        if j + D < NF and frags[j+D]['unit'] not in published:
            g = first_of[frags[j+D]['unit']]
            tags = [('dma', x) for x in g]
            force(tags)
            w = vm.wait_for(tags)
            if w: a(w)
            a('s_barrier'); barrier_at.append(j if not wpair else j - 1)
            published.update(g)
    a(';MID')
    w = vm.wait_for([('dma', 0)]); a(w); a('s_barrier'); published.add(0); barrier_at.append(-1)
    a(';MID')
    for j in range(D):
        for s in read_ops(j): a(s[1])
    a('.p2align 3')
    nm = 0; next_load_at = 0; over = 0
    rd = []
    for j in range(NF):
        f = frags[j]; jcur[0] = j
        if j in (72, 144, 216, 288): a(';MID')
        if j == 144 + 2: fillq += epi_pair(0, 1, 42, 0) + epi_pair(2, 3, 42, 1)
        if j == 144 + 72: assert not fillq, len(fillq)
        if j == 144 + 72 + 2: fillq += epi_pair(4, 5, 42, 2)
        if j == 144 + 144 + 2:
            assert not fillq
            fillq += epi_pair(0, 1, 42, 3)
        b = WF + 4*(j % NB)
        if j == 0: pre_emit(0, 0)
        for m in range(4):
            if m == 0 and j + D < NF: rd = read_ops(j + D)
            c = acc(f['slot'], f['mat'], m)
            cin = '0' if f['kk'] == 0 else vr(c, 4)
            a(f'v_mfma_f32_16x16x32_bf16 {vr(c,4)}, {vr(b,4)}, {hreg(m, f["kk"])}, {cin}')
            nm += 1
            t = 4
            refill()
            if m == 3:
                over += len(rd)
                for s in rd: a(s[1])
                rd = []
                n0 = len(a.lines)
                if j + 1 < NF: pre_emit(j+1, 0)
                t += 4*(len(a.lines) - n0)
            if t == 4 and not rd:
                if loadq and loadq[0][0] == 'v' and nm >= next_load_at:
                    emit_op(loadq.pop(0))
                    p1 = st['h'] < 18 or any('s[28:31]' in o[1] for o in loadq)
                    next_load_at = max(next_load_at, nm - 3) + (spacing if p1 else look2*spacing)
                    continue
                if fillq and fillq[0][0] == 'v':
                    emit_op(fillq.pop(0)); continue
            if rd and rd[0][0] == 'd':
                emit_op(rd.pop(0)); t += 8
            nval = 0
            while t < 16:
                cand = None
                for kinds in (('s',), ('a',)):
                    for q in (rd, loadq, fillq):
                        if q and q[0][0] in kinds and not (q[0][0] == 'a' and nval >= maxv):
                            cand = q; break
                    if cand is not None: break
                if cand is None: break
                op = cand.pop(0); emit_op(op)
                if op[0] == 'a':
                    t = max(t, 8) + 4; nval += 1
                else: t += 4
    assert not fillq and not loadq and st['dma'] == len(units), (len(fillq), len(loadq), st)
    a(';MID')
    for op in epi_single(2): emit_op(op)
    a(';MID')
    a('K4_END:\ns_endpgm')
    a.end_kernel(name, 512, sgpr=56, accum=256)

def gen_k5(a, P=3, xmap=0, aflags='', wflags=''):
    name = 'k5_kernel'
    RING = max(P*4096, 15360)
    WB = RING + 3072
    a.launch(name, 240, 256, lds=max(4*WB, 86016))
    a.kernel(name)
    a('s_load_dwordx2 s[4:5], s[0:1], 96')
    a('s_load_dwordx2 s[6:7], s[0:1], 120')
    a('s_load_dwordx2 s[8:9], s[0:1], 136')
    a('s_cmp_ge_u32 s2, 240\ns_cbranch_scc1 K5_END')
    a('s_and_b32 s10, s2, 7\ns_mul_i32 s10, s10, 30\ns_lshr_b32 s11, s2, 3\ns_add_u32 s10, s10, s11')
    a('s_cmp_ge_u32 s10, 234\ns_cbranch_scc1 K5_END')
    a('v_lshrrev_b32 v1, 6, v0')
    a('v_readfirstlane_b32 s3, v1')
    if xmap == 0:
        a(f's_mul_i32 s11, s10, {(65536+8)//9}\ns_lshr_b32 s11, s11, 16')
        a('s_mul_i32 s12, s11, 9\ns_sub_u32 s12, s10, s12')
    else:
        a('s_cmp_lt_u32 s10, 130\ns_cselect_b32 s16, 5, 4\ns_cselect_b32 s17, 0, 130\ns_cselect_b32 s18, 13108, 16384\ns_cselect_b32 s19, 0, 5')
        a('s_sub_u32 s10, s10, s17\ns_mul_i32 s11, s10, s18\ns_lshr_b32 s11, s11, 16\ns_mul_i32 s12, s11, s16\ns_sub_u32 s12, s10, s12\ns_add_u32 s12, s12, s19')
    a('s_mul_i32 s13, s11, 5')
    a(f's_mul_i32 s40, s13, {144*1024}\ns_mul_i32 s16, s3, {36*1024}\ns_add_u32 s40, s40, s16')
    a(f's_mul_i32 s41, s3, {36*32*1152}\ns_lshl_b32 s16, s12, 7\ns_add_u32 s41, s41, s16')
    a(f's_mul_i32 s42, s3, {WB}')
    a('v_and_b32 v0, 63, v0\nv_lshlrev_b32 v1, 4, v0')
    AV = [1, 12, 13, 14, 15]
    for m in range(1, 5): a(f'v_add_u32 v{AV[m]}, {m*144*1024}, v1')
    a('v_lshrrev_b32 v2, 3, v0\nv_and_b32 v3, 6, v2\nv_and_b32 v4, 7, v0\nv_xor_b32 v3, v3, v4\nv_lshlrev_b32 v3, 4, v3')
    a('v_mul_u32_u24 v2, 1152, v2\nv_add_u32 v2, v2, v3')
    DV = [2, 9, 10, 11]
    for q in range(1, 4): a(f'v_add_u32 v{DV[q]}, {q*(8*1152-1024)}, v2')
    a(f's_mov_b32 s22, {4608*1152}\ns_mov_b32 s23, 0x00020000\ns_mov_b32 s26, {2048*4608*2}\ns_mov_b32 s27, 0x00020000')
    a('s_waitcnt lgkmcnt(0)')
    a(f's_mov_b32 s20, s4\ns_mov_b32 s21, s5\ns_add_u32 s24, s8, {ACT_OFF}\ns_addc_u32 s25, s9, 0')
    AB = 16; WF = AB + max(20*P, 80); ACC = WF + 16; GB = ACC + 80
    def loads_dma(s):
        L = []
        for q in range(4):
            t = f's_add_u32 m0, s42, {s*4096}\n' if q == 0 else ''
            t += f'buffer_load_dwordx4 v{DV[q]}, s[20:23], s41 offen offset:{q*1024} lds {wflags}'
            if q == 3: t += f'\ns_add_u32 s41, s41, {32*1152}'
            L.append(t)
        return L
    def load_act(s, m):
        t = f'buffer_load_dwordx4 {vr(AB+20*s+4*m,4)}, v{AV[m]}, s[24:27], s40 offen {aflags}'
        if m == 4: t += '\ns_add_u32 s40, s40, 1024'
        return t
    for x in loads_dma(0): a(x)
    for m in range(5): a(load_act(0, m))
    a('s_lshl_b32 s14, s12, 6\ns_lshl_b32 s16, s3, 4\ns_add_u32 s14, s14, s16')
    a('s_mul_i32 s43, s13, 18432\ns_lshl_b32 s16, s14, 5\ns_add_u32 s43, s43, s16')
    a('v_lshrrev_b32 v3, 5, v0\nv_mul_u32_u24 v3, 18432, v3\nv_and_b32 v4, 31, v0\nv_lshl_add_u32 v3, v4, 4, v3')
    a.srd(28, 8, 2048*576*2, off=X1T_OFF)
    a('v_lshrrev_b32 v8, 2, v0\nv_lshlrev_b32 v8, 7, v8\nv_and_b32 v4, 3, v0\nv_lshl_add_u32 v8, v4, 3, v8\nv_add_u32 v8, s42, v8\nv_bfe_u32 v7, v0, 3, 2')
    for t in range(4):
        a(f's_add_u32 s16, s3, {t}\ns_and_b32 s16, s16, 3\nv_xor_b32 v{4+t}, s16, v7\nv_lshl_add_u32 v{4+t}, v{4+t}, 5, v8')
    for i in range(0, 80, 2): a(f'v_mov_b64 {vr(ACC+i,2)}, 0')
    for s in range(1, P):
        for x in loads_dma(s): a(x)
        for m in range(5): a(load_act(s, m))
    a(f's_mov_b32 s44, {36//P}')
    a(';MID')
    a('.p2align 3')
    a('K5_LOOP:')
    a('s_cmp_eq_u32 s44, 1\ns_cselect_b32 s22, 0, s22\ns_cselect_b32 s26, 0, s26')
    for s in range(P):
        a(f's_waitcnt vmcnt({9*P-4})')
        for t in range(4):
            a(f'ds_read_b64_tr_b16 {vr(WF+4*t,2)}, v{4+t} offset:{s*4096}\nds_read_b64_tr_b16 {vr(WF+4*t+2,2)}, v{4+t} offset:{s*4096+2048}')
        dm = loads_dma(s)
        a(f's_waitcnt vmcnt({9*P-6})')
        for t in range(4):
            a(f's_waitcnt lgkmcnt({6-2*t})')
            c = ACC + 4*t
            a(f'v_mfma_f32_16x16x32_bf16 {vr(c,4)}, {vr(WF+4*t,4)}, {vr(AB+20*s,4)}, {vr(c,4)}')
        pend = dm + [load_act(s, 0)]
        issued = 0
        for m in range(1, 5):
            if m > 1: a(f's_waitcnt vmcnt({9*P - 5 - m + issued})')
            for t in range(4):
                c = ACC + 16*m + 4*t
                a(f'v_mfma_f32_16x16x32_bf16 {vr(c,4)}, {vr(WF+4*t,4)}, {vr(AB+20*s+4*m,4)}, {vr(c,4)}')
                if pend and t < 3:
                    a(pend.pop(0)); issued += 1
            pend.append(load_act(s, m))
        for x in pend: a(x)
    a('s_cmp_lg_u32 s44, 2\ns_cbranch_scc1 K5_NOX')
    a('K5_NOX:')
    a('s_sub_u32 s44, s44, 1\ns_cmp_lg_u32 s44, 0\ns_cbranch_scc1 K5_LOOP')
    a(';MID')
    a(f's_add_u32 m0, s42, {RING}')
    a('buffer_load_dwordx4 v3, s[28:31], s43 offen lds')
    a(f's_add_u32 m0, s42, {RING+1024}\ns_add_u32 s43, s43, {2*18432}')
    a('buffer_load_dwordx4 v3, s[28:31], s43 offen lds')
    a(f's_add_u32 m0, s42, {RING+2048}\ns_add_u32 s43, s43, {2*18432}')
    a('buffer_load_dwordx4 v3, s[28:31], s43 offen lds')
    a('v_bfe_u32 v9, v0, 4, 2\nv_lshlrev_b32 v10, 4, v9\ns_lshl_b32 s16, s14, 2\nv_add_u32 v10, s16, v10')
    a(f's_add_u32 s8, s8, {MOD_OFF+5*576*4}\ns_addc_u32 s9, s9, 0')
    a(f'global_load_dwordx4 {vr(GB,4)}, v10, s[8:9]')
    a('s_waitcnt vmcnt(4)')
    a('v_add_u32 v8, s42, v1')
    for t in range(1, 4):
        for m in range(5):
            a(f'ds_write_b128 v8, {vr(ACC+16*m+4*t,4)} offset:{((t-1)*5+m)*1024}')
    a('v_and_b32 v11, 15, v0\nv_mul_u32_u24 v11, 1152, v11\nv_lshl_add_u32 v11, v9, 3, v11')
    a.srd(32, 6, 2048*576*2)
    a('s_mul_i32 s45, s13, 18432\ns_lshl_b32 s16, s14, 1\ns_add_u32 s45, s45, s16')
    for t in range(1, 4):
        a(f's_sub_u32 s16, s3, {t}\ns_and_b32 s16, s16, 3\ns_mul_i32 s16, s16, {WB}\nv_add_u32 v{4+t}, s16, v1')
    a('v_lshlrev_b32 v4, 3, v0\nv_add_u32 v4, s42, v4')
    a('s_mov_b32 s17, 0xffff0000')
    a('s_waitcnt lgkmcnt(0)')
    a(';MID')
    a('s_barrier')
    a(';MID')
    for m in range(5):
        for t in range(1, 4):
            a(f'ds_read_b128 {vr(AB+16*m+4*t,4)}, v{4+t} offset:{((t-1)*5+m)*1024}')
    a('s_waitcnt vmcnt(0)')
    for m in range(5):
        a(f'ds_read_b64_tr_b16 {vr(AB+16*m,2)}, v4 offset:{RING+m*512}')
    a('s_waitcnt lgkmcnt(5)')
    for m in range(5):
        c = ACC+16*m; b = AB+16*m
        for h in range(2):
            a(f'v_pk_add_f32 {vr(c+2*h,2)}, {vr(c+2*h,2)}, {vr(b+4+2*h,2)}\nv_pk_add_f32 {vr(b+8+2*h,2)}, {vr(b+8+2*h,2)}, {vr(b+12+2*h,2)}')
        for h in range(2):
            a(f'v_pk_add_f32 {vr(c+2*h,2)}, {vr(c+2*h,2)}, {vr(b+8+2*h,2)}')
    a('s_waitcnt lgkmcnt(0)')
    for m in range(5):
        c = ACC+16*m; b = AB+16*m
        a(f'v_lshlrev_b32 v{b+4}, 16, v{b}\nv_and_b32 v{b+5}, s17, v{b}\nv_lshlrev_b32 v{b+6}, 16, v{b+1}\nv_and_b32 v{b+7}, s17, v{b+1}')
        for h in range(2):
            a(f'v_pk_fma_f32 {vr(c+2*h,2)}, {vr(c+2*h,2)}, {vr(GB+2*h,2)}, {vr(b+4+2*h,2)}')
        a(f'v_cvt_pk_bf16_f32 v{c}, v{c}, v{c+1}\nv_cvt_pk_bf16_f32 v{c+1}, v{c+2}, v{c+3}')
        a(f'buffer_store_dwordx2 {vr(c,2)}, v11, s[32:35], s45 offen')
        if m < 4: a('s_add_u32 s45, s45, 18432')
    a(';MID')
    a('K5_END:\ns_endpgm')
    a.end_kernel(name, GB+4, sgpr=56)


WDP_OFF = 0x2000000
EX_OFF = 0x2800000
EXS_OFF = 0x2F00000
FL_OFF = 0x3000000

class Stream:
    def __init__(self, a, vm, frags, units, groups, loads, D, maxv=2, wevery=1):
        self.a, self.vm, self.frags, self.units, self.D, self.maxv = a, vm, frags, units, D, maxv
        self.first_of = {g[0]: g for g in groups}
        self.published = set(); self.barrier_at = []
        self.last_read = {}
        for j, f in enumerate(frags): self.last_read[f['unit']] = j
        self.loads = list(loads)
        self.loadq = []; self.fillq = []; self.cur_spacing = 4
        self.events = {}; self.j = 0; self.wevery = wevery; self.waited_upto = -1
    def emit(self, op):
        if op[0] == 'v': self.vm.issue(op[2] if len(op) > 2 else None)
        if op[0] == 'w':
            w = self.vm.wait_for(op[1])
            if w: self.a(w)
            return
        self.a(op[1])
    def slot_free(self, ui):
        u = self.units[ui]
        for v in range(ui):
            w = self.units[v]
            if w['lds'] < u['lds'] + u['size'] and u['lds'] < w['lds'] + w['size']:
                if not any(b > self.last_read[v] for b in self.barrier_at): return False
        return True
    def refill(self, forced=False):
        if self.loadq or not self.loads: return
        it = self.loads[0]
        if it.get('unit') is not None and not self.slot_free(it['unit']):
            assert not forced, ('forced load into busy slot', it['unit'], self.j)
            return
        if self.j < it.get('minj', -1):
            assert not forced, ('forced load too early', self.j)
            return
        self.loads.pop(0)
        self.loadq.extend(it['ops']()); self.cur_spacing = it['spacing']
    def issue_items(self, n):
        for _ in range(n):
            self.refill(True)
            while self.loadq: self.emit(self.loadq.pop(0))
    def force(self, tags):
        while not all(t in self.vm.idx for t in tags):
            self.refill(True); self.emit(self.loadq.pop(0))
    def publish(self, jr, jnow):
        ui = self.frags[jr]['unit']
        if ui in self.published: return
        g = self.first_of[ui]
        tags = [('dma', x) for x in g]
        self.force(tags)
        w = self.vm.wait_for(tags)
        if w: self.a(w)
        self.a('s_barrier'); self.barrier_at.append(jnow)
        self.published.update(g)
    def pre(self, j):
        NF = len(self.frags); D = self.D
        need = self.frags[j].get('need')
        if need:
            self.force(need)
            w = self.vm.wait_for(need)
            if w: self.a(w)
        if j > self.waited_upto:
            upto = min(j + self.wevery - 1, NF - 1)
            cnt = sum(self.frags[x]['nrd'] for x in range(upto + 1, min(j + D, NF)))
            self.a(f's_waitcnt lgkmcnt({cnt})')
            self.waited_upto = upto
        if j + D < NF: self.publish(j + D, j)
    def start(self):
        for j in range(self.D):
            self.publish(j, -1)
            for op in self.frags[j]['read'](): self.emit(op)
    def run(self):
        a = self.a; NF = len(self.frags); D = self.D
        nm = 0; next_load = 0
        self.pre(0)
        for j in range(NF):
            self.j = j
            if j in self.events: self.events[j]()
            rd = self.frags[j + D]['read']() if j + D < NF else []
            mf = self.frags[j]['mfma']
            for m, ins in enumerate(mf):
                a(ins); nm += 1
                t = 4
                self.refill()
                last = m == len(mf) - 1
                if last:
                    for op in rd:
                        self.emit(op); t += 8 if op[0] == 'd' else 4
                    rd = []
                    n0 = len(a.lines)
                    if j + 1 < NF: self.pre(j + 1)
                    t += 4*(len(a.lines) - n0)
                if t == 4 and not rd:
                    if self.loadq and self.loadq[0][0] == 'v' and nm >= next_load:
                        self.emit(self.loadq.pop(0))
                        next_load = max(next_load, nm - 3) + self.cur_spacing
                        continue
                    if self.fillq and self.fillq[0][0] == 'v':
                        self.emit(self.fillq.pop(0)); continue
                elif self.loadq and self.loadq[0][0] == 'v' and nm >= next_load + 2 and not rd:
                    self.emit(self.loadq.pop(0))
                    next_load = max(next_load, nm - 3) + self.cur_spacing
                    continue
                if rd and rd[0][0] == 'd':
                    self.emit(rd.pop(0)); t += 8
                nval = 0
                while t < 16:
                    cand = None
                    for kinds in (('s', 'w'), ('a',)):
                        for q in (rd, self.loadq, self.fillq):
                            if q and q[0][0] in kinds and not (q[0][0] == 'a' and nval >= self.maxv):
                                cand = q; break
                        if cand is not None: break
                    if cand is None: break
                    op = cand.pop(0); self.emit(op)
                    if op[0] == 'a':
                        t = max(t, 8) + 4; nval += 1
                    else: t += 4
        assert not self.loadq and not self.loads, (len(self.loadq), len(self.loads))

def gen_pack(a):
    a('s_load_dwordx2 s[4:5], s[0:1], 96\ns_load_dwordx2 s[6:7], s[0:1], 136')
    a('v_lshrrev_b32 v1, 6, v0\nv_readfirstlane_b32 s3, v1\nv_and_b32 v0, 63, v0')
    a('s_sub_u32 s10, s2, 128')
    a('s_cmp_lt_u32 s3, 5\ns_cbranch_scc1 PK_GO')
    a('s_cmp_lg_u32 s3, 5\ns_cbranch_scc1 PK_END\ns_cmp_ge_u32 s10, 32\ns_cbranch_scc1 PK_END')
    a(f'v_lshlrev_b32 v1, 7, v0\ns_lshl_b32 s11, s10, 13\ns_add_u32 s11, s11, {FL_OFF}\nv_add_u32 v1, s11, v1\nv_mov_b32 v2, 0\ns_waitcnt lgkmcnt(0)\nglobal_store_dword v1, v2, s[6:7]\ns_endpgm')
    a('PK_GO:')
    a('s_mul_i32 s11, s10, 5\ns_add_u32 s11, s11, s3')
    a('s_cmp_ge_u32 s11, 576\ns_cbranch_scc1 PK_END')
    a('s_lshr_b32 s12, s11, 2\ns_and_b32 s13, s11, 3')
    a(f's_mul_i32 s14, s12, {65536//36+1}\ns_lshr_b32 s14, s14, 16\ns_mul_i32 s15, s14, 36\ns_sub_u32 s15, s12, s15')
    a(f's_mul_i32 s16, s12, {32*1152}\ns_mul_i32 s17, s13, 288\ns_add_u32 s16, s16, s17')
    a('s_mul_i32 s18, s3, 9216\ns_mov_b32 m0, s18')
    a(f'v_mul_u32_u24 v1, {65536//18+1}, v0\nv_lshrrev_b32 v1, 16, v1\nv_mul_u32_u24 v2, 18, v1\nv_sub_u32 v2, v0, v2\nv_mul_u32_u24 v1, 1152, v1\nv_lshl_add_u32 v1, v2, 4, v1')
    a('s_waitcnt lgkmcnt(0)')
    a.srd(20, 4, 4608*1152)
    for n in range(9):
        a('buffer_load_dwordx4 v1, s[20:23], s16 offen lds')
        if n < 8:
            a(f's_add_u32 m0, m0, 1024\nv_add_u32 v2, 10, v2\nv_cmp_le_u32 vcc, 18, v2\nv_mov_b32 v3, {3*1152+160}\nv_mov_b32 v4, {4*1152+160-288}\nv_cndmask_b32 v3, v3, v4, vcc\nv_add_u32 v1, v1, v3\nv_subrev_u32 v4, 18, v2\nv_cndmask_b32 v2, v2, v4, vcc')
    a('v_lshrrev_b32 v5, 2, v0\nv_mul_u32_u24 v5, 288, v5\nv_add_u32 v5, s18, v5\nv_and_b32 v6, 3, v0\nv_lshl_add_u32 v11, v6, 3, v5\nv_lshl_add_u32 v5, v6, 4, v5')
    for rel in range(4):
        a(f's_add_u32 s19, s14, {rel}\ns_and_b32 s19, s19, 3\ns_lshl_b32 s19, s19, 6\nv_add_u32 v{7+rel}, s19, v5')
    a.srd(24, 6, 16*324*1024, off=WDP_OFF)
    a(f's_lshl_b32 s19, s14, 2\ns_add_u32 s19, s19, s13\ns_mul_i32 s19, s19, {324*1024}')
    a('s_mul_i32 s28, s15, 5120\ns_add_u32 s28, s28, s19')
    a(f's_lshl_b32 s29, s15, 11\ns_add_u32 s29, s29, s19\ns_add_u32 s30, s29, {252*1024}\ns_add_u32 s29, s29, {180*1024}\ns_add_u32 s31, s28, 4096')
    a('v_lshlrev_b32 v1, 4, v0')
    a('s_waitcnt vmcnt(0)')
    dst = {(1, 0): ('s28', 0), (1, 1): ('s28', 1024), (2, 0): ('s28', 2048), (2, 1): ('s28', 3072), (3, 0): ('s29', 0), (3, 1): ('s29', 1024), (0, 0): ('s30', 0), (0, 1): ('s30', 1024)}
    L = list(dst.items())
    for n, ((rel, t), _) in enumerate(L):
        a(f'ds_read_b64_tr_b16 {vr(16+4*n,2)}, v{7+rel} offset:{8*t}\nds_read_b64_tr_b16 {vr(18+4*n,2)}, v{7+rel} offset:{8*t+16*288}')
        if n == 5: a('s_waitcnt lgkmcnt(8)')
    a(f'ds_read_b64_tr_b16 v[48:49], v11 offset:256\nds_read_b64_tr_b16 v[50:51], v11 offset:{256+16*288}')
    for n, (_, (so, off)) in enumerate(L):
        if n >= 2: a(f's_waitcnt lgkmcnt({2*(8-n)})')
        a(f'buffer_store_dwordx4 {vr(16+4*n,4)}, v1, s[24:27], {so} offen offset:{off} sc1')
    a('s_waitcnt lgkmcnt(0)')
    a('buffer_store_dwordx4 v[48:51], v1, s[24:27], s31 offen sc1')
    a('PK_END:\ns_endpgm')

def gen_k5s(a, D=6, pre=3, sp1=2.5, sp2=6, g1=2, ackd=40):
    name = 'k5_kernel'
    RINGF = 144
    XST = RINGF*1024
    a.launch(name, 256, 256, lds=XST + 4*3072)
    a.kernel(name)
    a('s_load_dwordx2 s[8:9], s[0:1], 136')
    a('s_load_dwordx2 s[6:7], s[0:1], 120')
    a('s_cmp_ge_u32 s2, 256\ns_cbranch_scc1 K5_END')
    a('v_lshrrev_b32 v1, 6, v0')
    a('v_readfirstlane_b32 s3, v1')
    a('s_bfe_u32 s10, s2, 0x20001')
    a('s_and_b32 s11, s2, 1\ns_lshl_b32 s11, s11, 3\ns_bfe_u32 s12, s2, 0x30003\ns_add_u32 s11, s11, s12')
    a('s_lshr_b32 s12, s2, 6')
    a('s_lshl_b32 s13, s11, 3\ns_lshl_b32 s16, s3, 1\ns_add_u32 s13, s13, s16')
    a(f's_mul_i32 s40, s13, {144*1024}\ns_mul_i32 s16, s10, {36*1024}\ns_add_u32 s40, s40, s16')
    a(f's_lshl_b32 s41, s10, 2\ns_add_u32 s41, s41, s12\ns_mul_i32 s41, s41, {324*1024}\ns_lshl_b32 s46, s3, 10\ns_add_u32 s41, s41, s46')
    a(f'v_and_b32 v0, 63, v0\nv_lshlrev_b32 v1, 4, v0\nv_add_u32 v2, {144*1024}, v1')
    a(f's_mov_b32 s22, {16*324*1024}\ns_mov_b32 s23, 0x00020000\ns_mov_b32 s26, {2048*4608*2}\ns_mov_b32 s27, 0x00020000')
    a('s_mov_b32 m0, s46')
    a('s_waitcnt lgkmcnt(0)')
    a(f's_add_u32 s20, s8, {WDP_OFF}\ns_addc_u32 s21, s9, 0\ns_add_u32 s24, s8, {ACT_OFF}\ns_addc_u32 s25, s9, 0')
    H = 16; NB = D + 1; WF = 48; ACC = WF + 4*NB; RX = ACC + 72; GB = RX + 40; TMP = GB + 12
    vm = VmTrack()
    def hreg(m, s):
        idx = 2*s + m
        return f'a[{4*idx}:{4*idx+3}]' if idx < 64 else vr(H + 4*(idx-64), 4)
    NU = 81
    units = [dict(lds=(4*u % RINGF)*1024, size=4096) for u in range(NU)]
    def dma_item(u, sp):
        def ops():
            L = []
            if u:
                L.append(('s', 's_add_u32 s41, s41, 4096')); L.append(('s', f's_add_u32 m0, s46, {units[u]["lds"]}'))
            L.append(('v', 'buffer_load_dwordx4 v1, s[20:23], s41 offen lds', ('dma', u)))
            return L
        return dict(ops=ops, unit=u, spacing=sp)
    def act_item(s, sp):
        def ops():
            L = []
            if s and s % 4 == 0: L.append(('s', 's_add_u32 s40, s40, 4096'))
            for m in range(2):
                L.append(('v', f'buffer_load_dwordx4 {hreg(m,s)}, v{1+m}, s[24:27], s40 offen offset:{(s%4)*1024}', ('h', s, m)))
            return L
        return dict(ops=ops, spacing=sp)
    loads = []; nu = 0
    for s in range(36):
        while 4*nu < 5*(s+1) + D: loads.append(dma_item(nu, sp1)); nu += 1
        loads.append(act_item(s, sp1))
    n_first = next(k for k, it in enumerate(loads) if sum(1 for x in loads[:k] if 'unit' not in x) >= pre)
    def x1_ops():
        L = [('s', f's_add_u32 m0, s47, {XST}'), ('v', 'buffer_load_dwordx4 v1, s[28:31], s43 offen lds', None),
             ('s', f's_add_u32 m0, s47, {XST+1024}'), ('s', 's_add_u32 s43, s43, 18432'), ('v', 'buffer_load_dwordx4 v1, s[28:31], s43 offen lds', None),
             ('s', f's_add_u32 m0, s47, {XST+2048}'), ('v', 'buffer_load_dwordx4 v5, s[28:31], s44 offen lds', None),
             ('v', f'global_load_dwordx4 {vr(GB,4)}, v6, s[4:5]', None), ('v', f'global_load_dwordx4 {vr(GB+4,4)}, v6, s[4:5] offset:16', None),
             ('v', f'global_load_dwordx4 {vr(GB+8,4)}, v7, s[4:5]', ('x1',))]
        return L
    while nu < NU:
        loads.append(dma_item(nu, sp2)); nu += 1
    loads.append(dict(ops=x1_ops, spacing=sp2))
    RA = [3, 4, 8]
    frags = []
    def add_frag(tile, s):
        j = len(frags); off = (j % RINGF)*1024
        b = WF + 4*(j % NB)
        def rd(off=off, b=b):
            return [('d', f'ds_read_b128 {vr(b,4)}, v{RA[off >> 16]} offset:{off & 0xffff}')]
        mf = []
        for m in range(2):
            c = ACC + 8*tile + 4*m
            mf.append(f'v_mfma_f32_16x16x32_bf16 {vr(c,4)}, {vr(b,4)}, {hreg(m,s)}, {"0" if s == 0 else vr(c,4)}')
        frags.append(dict(unit=j // 4, read=rd, nrd=1, mfma=mf))
    for s in range(36):
        for t in range(5):
            add_frag(t, s)
            if t == 0: frags[-1]['need'] = [('h', s, 1)]
    for t0 in (5, 7):
        for s in range(36):
            for t in range(2): add_frag(t0 + t, s)
    groups = [[0], [1]]; u = 2
    while u < NU:
        n = g1 if u < 48 else 4
        groups.append(list(range(u, min(u+n, NU)))); u += n
    S = Stream(a, vm, frags, units, groups, loads, D, wevery=2)
    S.issue_items(n_first)
    a('v_mov_b32 v3, v1\nv_add_u32 v4, 0x10000, v1\nv_add_u32 v8, 0x20000, v1')
    a('s_mul_i32 s47, s3, 3072')
    a('s_mul_i32 s14, s12, 144\ns_lshl_b32 s16, s10, 5\ns_add_u32 s15, s14, s16\ns_add_u32 s14, s14, 128')
    a('s_mul_i32 s42, s13, 18432\ns_lshl_b32 s16, s15, 5\ns_add_u32 s43, s42, s16\ns_lshl_b32 s16, s14, 5\ns_add_u32 s44, s42, s16')
    a('v_lshrrev_b32 v5, 5, v0\nv_mul_u32_u24 v5, 18432, v5\nv_and_b32 v6, 31, v0\nv_lshl_add_u32 v5, v6, 4, v5')
    a('v_lshrrev_b32 v9, 4, v0\ns_lshl_b32 s16, s15, 2\nv_lshl_add_u32 v6, v9, 5, s16\ns_lshl_b32 s16, s14, 2\nv_lshl_add_u32 v7, v9, 4, s16')
    a(f's_add_u32 s4, s8, {MOD_OFF+5*576*4}\ns_addc_u32 s5, s9, 0')
    a.srd(28, 8, 2048*576*2, off=X1T_OFF)
    a.srd(32, 8, FL_OFF + 0x40000 - EX_OFF, off=EX_OFF)
    a.srd(36, 6, 2048*576*2)
    a('s_lshl_b32 s48, s11, 2\ns_add_u32 s48, s48, s12\ns_lshl_b32 s48, s48, 2')
    a('s_mul_i32 s49, s3, 6144')
    for rel in (1, 2, 3):
        a(f's_add_u32 s16, s10, {rel}\ns_and_b32 s16, s16, 3\ns_add_u32 s16, s16, s48\ns_mul_i32 s16, s16, 24576\ns_add_u32 s16, s16, s49\ns_add_u32 s{49+rel}, s16, {(rel-1)*2048}')
    a(f's_add_u32 s16, s48, s3\ns_lshl_b32 s16, s16, 12\ns_lshl_b32 s17, s10, 10\ns_add_u32 s16, s16, s17\ns_add_u32 s53, s16, {EXS_OFF-EX_OFF}')
    a('s_add_u32 s17, s48, s10')
    a('s_mul_i32 s54, s17, 24576\ns_add_u32 s54, s54, s49')
    a(f's_lshl_b32 s55, s17, 12\ns_add_u32 s55, s55, {EXS_OFF-EX_OFF}')
    a(f's_lshl_b32 s16, s17, 9\ns_lshl_b32 s18, s3, 7\ns_add_u32 s16, s16, s18\ns_add_u32 s56, s16, {FL_OFF-EX_OFF}\ns_add_u32 s57, s56, 0x20000')
    a('v_min_u32 v10, 2, v0\nv_sub_u32 v10, s10, v10\nv_add_u32 v10, 3, v10\nv_and_b32 v10, 3, v10\nv_add_u32 v10, s48, v10\nv_lshlrev_b32 v10, 9, v10\nv_add_u32 v10, s18, v10')
    a(f'v_cmp_lt_u32 vcc, 2, v0\nv_mov_b32 v11, {FL_OFF-EX_OFF}\nv_mov_b32 v12, {FL_OFF-EX_OFF+0x20000}\nv_cndmask_b32 v11, v11, v12, vcc\nv_add_u32 v10, v10, v11')
    a('v_mov_b32 v11, 0\nv_mov_b32 v12, 1')
    a(';MID')
    S.start()
    a(';MID')
    def send_group(t0, so, tag):
        L = []
        for m in range(2):
            x, y = ACC + 8*t0 + 4*m, ACC + 8*(t0+1) + 4*m
            L += [('a', f'v_cvt_pk_bf16_f32 v{x}, v{x}, v{x+1}'), ('a', f'v_cvt_pk_bf16_f32 v{x+1}, v{x+2}, v{x+3}'),
                  ('a', f'v_cvt_pk_bf16_f32 v{x+2}, v{y}, v{y+1}'), ('a', f'v_cvt_pk_bf16_f32 v{x+3}, v{y+2}, v{y+3}'),
                  ('v', f'buffer_store_dwordx4 {vr(x,4)}, v1, s[32:35], {so} offen offset:{1024*m} sc1', tag if m else None)]
        return L
    def send_s():
        x = ACC + 32
        return [('a', f'v_cvt_pk_bf16_f32 v{TMP+k}, v{x+2*k}, v{x+2*k+1}') for k in range(4)] + [('v', f'buffer_store_dwordx4 {vr(TMP,4)}, v1, s[32:35], s53 offen sc1', 'send1')]
    def ev(j, fn): S.events[j] = fn
    ev(90, lambda: a(';MID'))
    ev(180, lambda: a(';MID'))
    ev(183, lambda: S.fillq.extend(send_group(0, 's50', None) + send_group(2, 's51', None) + send_s()))
    ev(183 + ackd + 16, lambda: S.fillq.extend([('w', ['send1']), ('v', 'buffer_store_dword v12, v11, s[32:35], s56 offen sc1', None)]))
    ev(252, lambda: a(';MID'))
    ev(255, lambda: S.fillq.extend(send_group(5, 's52', 'send2')))
    ev(255 + ackd, lambda: S.fillq.extend([('w', ['send2']), ('v', 'buffer_store_dword v12, v11, s[32:35], s57 offen sc1', None)]))
    a('.p2align 3')
    S.run()
    assert not S.fillq
    a(';MID')
    a('s_mov_b32 s58, 0')
    a('K5_POLL:\nbuffer_load_dword v13, v10, s[32:35], 0 offen sc1\ns_add_u32 s58, s58, 1\ns_waitcnt vmcnt(0)\nv_cmp_eq_u32 vcc, 0, v13\ns_cmp_ge_u32 s58, 60000\ns_cbranch_scc1 K5_GOT\ns_nop 2\ns_cbranch_vccnz K5_POLL\nK5_GOT:')
    a(';MID')
    for rel in range(3):
        for m in range(2):
            if rel == 2 and m == 0: a('s_add_u32 s54, s54, 4096')
            a(f'buffer_load_dwordx4 {vr(RX+8*rel+4*m,4)}, v1, s[32:35], s54 offen offset:{(rel%2)*2048+m*1024} sc1')
    a('s_cmp_lg_u32 s3, s10\ns_cbranch_scc1 K5_NOS1')
    for rel in range(3):
        a(f's_add_u32 s16, s10, {rel+1}\ns_and_b32 s16, s16, 3\ns_lshl_b32 s16, s16, 10\ns_add_u32 s16, s16, s55')
        a(f'buffer_load_dwordx4 {vr(RX+24+4*rel,4)}, v1, s[32:35], s16 offen sc1')
    a('K5_NOS1:')
    XR = WF
    a(f'v_and_b32 v13, 15, v0\nv_lshlrev_b32 v14, 3, v13\nv_lshl_add_u32 v14, v9, 8, v14\ns_add_u32 s16, s47, {XST}\nv_add_u32 v14, s16, v14\nv_lshl_add_u32 v15, v0, 3, s16')
    for m in range(2):
        for t in range(2):
            a(f'ds_read_b64_tr_b16 {vr(XR+4*m+2*t,2)}, v14 offset:{m*1024+t*128}')
    for m in range(2):
        a(f'ds_read_b64_tr_b16 {vr(XR+8+2*m,2)}, v15 offset:{2048+m*512}')
    a('v_mul_u32_u24 v13, 1152, v13\nv_lshl_add_u32 v14, v9, 4, v13\nv_lshl_add_u32 v15, v9, 3, v13')
    a('s_lshl_b32 s16, s15, 1\ns_add_u32 s45, s42, s16\ns_lshl_b32 s16, s14, 1\ns_add_u32 s46, s42, s16')
    a('s_mov_b32 s17, 0xffff0000\nv_mov_b32 v11, 0x3f80\nv_mov_b32 v12, 0x3f800000')
    a('s_waitcnt lgkmcnt(0)')
    XU = H
    for k in range(12):
        a(f'v_lshlrev_b32 v{XU+2*k}, 16, v{XR+k}\nv_and_b32 v{XU+2*k+1}, s17, v{XR+k}')
    a('s_waitcnt vmcnt(0)')
    a(';MID')
    def accreg(m, e): return ACC + 8*(7 + e//4) + 4*m + e % 4
    for m in range(2):
        for rel in range(3):
            for k in range(4):
                r = RX + 8*rel + 4*m + k
                a(f'v_dot2c_f32_bf16 v{accreg(m,2*k)}, v{r}, v11\nv_dot2c_f32_bf16 v{accreg(m,2*k+1)}, v{r}, v12')
        a('s_nop 2')
        for k in range(4):
            c = accreg(m, 2*k)
            a(f'v_pk_fma_f32 {vr(XU+8*m+2*k,2)}, {vr(c,2)}, {vr(GB+2*k,2)}, {vr(XU+8*m+2*k,2)}')
        for k in range(4):
            a(f'v_cvt_pk_bf16_f32 v{TMP+4*m+k}, v{XU+8*m+2*k}, v{XU+8*m+2*k+1}')
        a(f'buffer_store_dwordx4 {vr(TMP+4*m,4)}, v14, s[36:39], s45 offen')
        if m == 0: a('s_add_u32 s45, s45, 18432')
    a('s_cmp_lg_u32 s3, s10\ns_cbranch_scc1 K5_END')
    x = ACC + 32
    for rel in range(3):
        for k in range(4):
            r = RX + 24 + 4*rel + k
            a(f'v_dot2c_f32_bf16 v{x+2*k}, v{r}, v11\nv_dot2c_f32_bf16 v{x+2*k+1}, v{r}, v12')
    a('s_nop 2')
    for k in range(4):
        a(f'v_pk_fma_f32 {vr(XU+16+2*k,2)}, {vr(x+2*k,2)}, {vr(GB+8+2*(k%2),2)}, {vr(XU+16+2*k,2)}')
    for k in range(4):
        a(f'v_cvt_pk_bf16_f32 v{x+k}, v{XU+16+2*k}, v{XU+16+2*k+1}')
    a(f'buffer_store_dwordx2 {vr(x,2)}, v15, s[36:39], s46 offen\ns_add_u32 s46, s46, 18432\nbuffer_store_dwordx2 {vr(x+2,2)}, v15, s[36:39], s46 offen')
    a('K5_END:\ns_endpgm')
    assert TMP + 8 <= 256
    a.end_kernel(name, 512, sgpr=64, accum=256)

STAMP_OFF = 0x4000000
def add_stamps(a, flush=False):
    out = []; k = -1; nmid = 0
    lines = a.lines
    for i, ln in enumerate(lines):
        t = ln.strip()
        if t.endswith('_kernel:') and t[0] == 'k':
            k += 1; nmid = 0
            out.append(ln)
            out += ['    s_memrealtime s[70:71]', '    s_memtime s[72:73]', '    s_load_dwordx2 s[68:69], s[0:1], 136', '    v_readfirstlane_b32 s67, v0', '    s_mov_b32 s66, s2', '    s_nop 0']
            for m in range(10): out.append(f'    s_mov_b64 s[{76+2*m}:{77+2*m}], 0')
            continue
        if t.startswith(';MID'):
            if len(t.split()) > 1: nmid = int(t.split()[1])
            out.append(f'    s_memtime s[{76+2*nmid}:{77+2*nmid}]'); nmid += 1
            continue
        if t == 's_endpgm' and k >= 0:
            a.uid += 1; L = f'LST_{a.uid}'
            out += ['    s_mov_b64 exec, -1', '    s_waitcnt vmcnt(0)', '    s_memrealtime s[74:75]', '    s_memtime s[96:97]', '    s_waitcnt lgkmcnt(0)',
                    '    s_cmp_ge_u32 s67, 64', f'    s_cbranch_scc1 {L}',
                    f'    s_lshl_b32 s66, s66, 6', f'    s_add_u32 s66, s66, {STAMP_OFF + k*65536}', '    v_mov_b32 v0, s66',
                    '    v_mov_b32 v2, s70', '    v_mov_b32 v3, s74', '    s_sub_u32 s96, s96, s72', '    v_mov_b32 v4, s96', '    v_mov_b32 v5, 1']
            out += ['    global_store_dwordx4 v0, v[2:5], s[68:69]', '    s_nop 1']
            for q in range(2):
                for j in range(4):
                    m = 4*q + j
                    out += [f'    s_sub_u32 s{76+2*m}, s{76+2*m}, s72', f'    v_mov_b32 v{2+j}, s{76+2*m}']
                out += [f'    global_store_dwordx4 v0, v[2:5], s[68:69] offset:{16+16*q}', '    s_nop 1']
            out += [f'{L}:', ln]
            continue
        out.append(ln)
    a.lines = out
    a.kds = [re.sub(r'next_free_sgpr \d+', 'next_free_sgpr 100', kd) for kd in a.kds]
    a.kernel('blk_kernel')
    a('s_memrealtime s[4:5]\ns_waitcnt lgkmcnt(0)')
    a('L_spin:\ns_memrealtime s[6:7]\ns_waitcnt lgkmcnt(0)\ns_sub_u32 s8, s6, s4\ns_cmp_lt_u32 s8, 8000\ns_cbranch_scc1 L_spin')
    a.lines.append('    s_endpgm')
    a.end_kernel('blk_kernel', 8, 32)
    a.launches = ['; @launch kernel=blk_kernel grid=(1,1,1) block=(64,1,1) lds=0'] + a.launches
    if flush:
        a.kernel('fl_kernel')
        a('s_load_dwordx2 s[4:5], s[0:1], 136\nv_lshlrev_b32 v1, 4, v0\ns_waitcnt lgkmcnt(0)')
        a.srd(8, 4, WS_BYTES)
        a('s_and_b32 s21, s2, 255\ns_lshl_b32 s21, s21, 19\ns_add_u32 s21, s21, 0x8000000\ns_mov_b32 s22, 128')
        a('L_fl:\nbuffer_load_dwordx4 v[8:11], v1, s[8:11], s21 offen\ns_add_u32 s21, s21, 4096\ns_sub_u32 s22, s22, 1\ns_cmp_lg_u32 s22, 0\ns_cbranch_scc1 L_fl\ns_waitcnt vmcnt(0)')
        a.lines.append('    s_endpgm')
        a.end_kernel('fl_kernel', 16, 32)
        a.launches = ['; @launch kernel=fl_kernel grid=(256,1,1) block=(256,1,1) lds=0'] + a.launches


def add_dbg_stamps(a):
    grids = [int(re.search(r'grid=\((\d+)', l).group(1)) for l in a.launches]
    add_stamps(a)
    a.launches = a.launches[1:]
    n = len(grids)
    a.launch('rpt_kernel', 1, 64)
    a.kernel('rpt_kernel')
    a('s_cmp_ge_u32 s2, 1\ns_cbranch_scc1 RPT_END')
    a('s_load_dwordx4 s[4:7], s[0:1], 128\ns_waitcnt lgkmcnt(0)')
    a(f's_add_u32 s6, s6, {STAMP_OFF}\ns_addc_u32 s7, s7, 0')
    for k, g in enumerate(grids):
        a('v_mov_b32 v4, -1\nv_mov_b32 v5, 0')
        for c in range((g + 63)//64):
            a(f'v_add_u32 v1, {c*64}, v0\nv_min_u32 v1, {g-1}, v1\nv_lshlrev_b32 v1, 6, v1\nv_add_u32 v1, {k*65536}, v1')
            a('global_load_dwordx2 v[2:3], v1, s[6:7]\ns_waitcnt vmcnt(0)\nv_min_u32 v4, v4, v2\nv_max_u32 v5, v5, v3')
        a('v_not_b32 v4, v4\nv_mov_b32 v1, 0')
        a(f'global_atomic_umax v1, v4, s[4:5] offset:{8*k}\nglobal_atomic_umax v1, v5, s[4:5] offset:{8*k+4}')
        a(f'global_atomic_umax v1, v4, s[4:5] offset:{8*k-512*n}\nglobal_atomic_umax v1, v5, s[4:5] offset:{8*k+4-512*n}')
    a('RPT_END:')
    a.lines.append('    s_endpgm')
    a.end_kernel('rpt_kernel', 16, 32)

def add_spin_probe(a, k, which):
    grids = [int(re.search(r'grid=\((\d+)', l).group(1)) for l in a.launches]
    add_stamps(a)
    a.launches = a.launches[1:]
    a.launch('rpt_kernel', 1, 64)
    a.kernel('rpt_kernel')
    a('s_cmp_ge_u32 s2, 1\ns_cbranch_scc1 RPT_END')
    a('s_load_dwordx4 s[4:7], s[0:1], 128\ns_waitcnt lgkmcnt(0)')
    a(f's_add_u32 s6, s6, {STAMP_OFF}\ns_addc_u32 s7, s7, 0')
    a('s_memrealtime s[10:11]\ns_waitcnt lgkmcnt(0)')
    g = grids[k]
    a('v_mov_b32 v4, 0\nv_mov_b32 v5, -1')
    for c in range((g + 63)//64):
        a(f'v_add_u32 v1, {c*64}, v0\nv_min_u32 v1, {g-1}, v1\nv_lshlrev_b32 v1, 6, v1\nv_add_u32 v1, {k*65536}, v1')
        a('global_load_dwordx2 v[2:3], v1, s[6:7]\ns_waitcnt vmcnt(0)\nv_sub_u32 v2, s10, v2\nv_sub_u32 v3, s10, v3\nv_max_u32 v4, v4, v2\nv_min_u32 v5, v5, v3')
    r = 4 if which == 0 else 5
    op = 's_max_u32' if which == 0 else 's_min_u32'
    a(f'v_readlane_b32 s12, v{r}, 0')
    for l in range(1, 64):
        a(f'v_readlane_b32 s13, v{r}, {l}\ns_nop 1\n{op} s12, s12, s13')
    a('s_min_u32 s12, s12, 20000')
    a('s_sub_u32 s12, 20000, s12')
    a('RPT_SPIN:\ns_memrealtime s[14:15]\ns_waitcnt lgkmcnt(0)\ns_sub_u32 s16, s14, s10\ns_cmp_lt_u32 s16, s12\ns_cbranch_scc1 RPT_SPIN')
    a('RPT_END:')
    a.lines.append('    s_endpgm')
    a.end_kernel('rpt_kernel', 16, 32)

HEADER = open('adaLN_cond__ssm_conv_s4__glu_gated_reglu__prompt.s.ref').read().split('; Override')[0] if False else ''

def build(upto=5, stamps=False, **kw):
    a = Asm()
    gen_k1(a, **kw.get('k1', {}))
    if upto >= 2: gen_k2(a, **kw.get('k2', {}))
    s4 = kw.get('s4', True)
    if upto >= 3: gen_k3(a, pack=s4)
    if upto >= 4: gen_k4(a, **kw.get('k4', {}))
    if upto >= 5: (gen_k5s if s4 else gen_k5)(a, **kw.get('k5', {}))
    a('CODE_END:')
    a('s_nop 0')
    if stamps == 'dbg': add_dbg_stamps(a)
    elif isinstance(stamps, tuple): add_spin_probe(a, *stamps)
    elif stamps: add_stamps(a, flush=True)
    return a.text()

if __name__ == '__main__':
    txt = build()
    open(sys.argv[1], 'w').write(txt)
```

```python
import sys, math, struct, re
from ag import Asm

def f2u(x): return struct.unpack('<I', struct.pack('<f', x))[0]
LOG2E = f2u(1.4426950408889634)
INV2PI = f2u(0.15915494309189535)

MOD_OFF = 0
KT_OFF = 0x4000
XT_OFF = 0x100000
X1T_OFF = 0x600000
H2F_OFF = 0x900000
ACT_OFF = 0xC00000
WS_BYTES = 268435456

N_KGEN, N_LN, N_MOD = 144, 128, 108
ROLES = {0: [('kgen', 0, 144), ('ln', 144, 272), ('mod', 272, 380)], 1: [('conv', 0, 144), ('side', 144, 256)], 2: [('ln2', 0, 128), ('pack', 128, 243)]}

def vr(b, n): return f'v[{b}:{b+n-1}]' if n > 1 else f'v{b}'

def bf16_round(a, dst, src):
    a(f'v_cvt_pk_bf16_f32 v{dst}, v{src}, v{src}')
    a(f'v_lshlrev_b32 v{dst}, 16, v{dst}')

def gen_k1(a, codepf=True, zero_flags=None):
    name = 'k1_kernel'
    a.launch(name, N_KGEN + N_LN + N_MOD, 256, lds=4*16*528)
    a.kernel(name)
    a('s_load_dwordx2 s[6:7], s[0:1], 136')
    if codepf:
        a('s_cmp_ge_u32 s2, 8\ns_cbranch_scc1 K1_NOPF')
        a('s_getpc_b64 s[4:5]\nK1_PC0:\nv_lshlrev_b32 v1, 7, v0\nv_min_u32 v2, CODE_END-K1_PC0-4, v1\nglobal_load_dword v120, v2, s[4:5]')
        a('v_add_u32 v1, 0x8000, v1\nv_min_u32 v2, CODE_END-K1_PC0-4, v1\nglobal_load_dword v121, v2, s[4:5]')
        a('K1_NOPF:')
    a(f's_cmp_lt_u32 s2, {N_KGEN}\ns_cbranch_scc1 K1_KGEN')
    a(f's_cmp_lt_u32 s2, {N_KGEN+N_LN}\ns_cbranch_scc1 K1_LN')
    a(f's_cmp_lt_u32 s2, {N_KGEN+N_LN+N_MOD}\ns_cbranch_scc1 K1_MOD')
    a('s_endpgm')
    a('K1_MOD:')
    a('s_load_dwordx4 s[8:11], s[0:1], 104')
    a(f's_sub_u32 s3, s2, {N_KGEN+N_LN}')
    a('v_lshrrev_b32 v1, 6, v0\nv_mul_u32_u24 v1, 144, v1\nv_bfe_u32 v2, v0, 2, 4\nv_add_u32 v1, v1, v2')
    a('v_lshlrev_b32 v3, 1, v1')
    a('v_mul_u32_u24 v1, 6912, v1\nv_and_b32 v2, 3, v0\nv_lshlrev_b32 v2, 4, v2\nv_add_u32 v1, v1, v2')
    a('s_lshl_b32 s4, s3, 6')
    a('s_waitcnt lgkmcnt(0)')
    a(';MID 0')
    if zero_flags:
        a(f's_cmp_ge_u32 s3, {zero_flags[1]//4}\ns_cbranch_scc1 K1_NOZ')
        a(f's_lshl_b32 s5, s3, 15\ns_add_u32 s5, s5, {zero_flags[0]}\nv_lshlrev_b32 v4, 7, v0\nv_add_u32 v4, s5, v4\nv_mov_b32 v5, 0\nglobal_store_dword v4, v5, s[6:7]\nK1_NOZ:')
    a.srd(12, 10, 576*6912)
    for i in range(9):
        a(f'global_load_ushort v{8+i}, v3, s[8:9] offset:{32*i}')
    for i in range(9):
        a(f'buffer_load_dwordx4 {vr(20+4*i,4)}, v1, s[12:15], s4 offen')
        if i < 8: a(f's_add_u32 s4, s4, {16*6912}')
    a(f's_mov_b32 s16, {f2u(-1.4426950408889634)}')
    a('s_mov_b32 s17, 0xffff0000')
    a('s_waitcnt vmcnt(9)')
    a(';MID')
    for i in range(9):
        a(f'v_lshlrev_b32 v{8+i}, 16, v{8+i}')
    for i in range(9):
        a(f'v_mul_f32 v{60+i}, s16, v{8+i}')
    for i in range(9):
        a(f'v_exp_f32 v{60+i}, v{60+i}')
    for i in range(9):
        a(f'v_add_f32 v{60+i}, 1.0, v{60+i}')
    for i in range(9):
        a(f'v_rcp_f32 v{60+i}, v{60+i}')
    for i in range(9):
        a(f'v_mul_f32 v{8+i}, v{8+i}, v{60+i}')
    for i in range(9):
        bf16_round(a, 8+i, 8+i)
    for i in range(9):
        a(f's_waitcnt vmcnt({8-i})')
        for j in range(4):
            w = 20+4*i+j
            a(f'v_lshlrev_b32 v60, 16, v{w}\nv_and_b32 v61, s17, v{w}')
            if i == 0:
                a(f'v_mul_f32 v{70+2*j}, v60, v{8+i}\nv_mul_f32 v{71+2*j}, v61, v{8+i}')
            else:
                a(f'v_fmac_f32 v{70+2*j}, v60, v{8+i}\nv_fmac_f32 v{71+2*j}, v61, v{8+i}')
    a(';MID')
    for sh in (4, 8):
        for j in range(8):
            a(f'v_add_f32_dpp v{70+j}, v{70+j}, v{70+j} row_ror:{sh} row_mask:0xf bank_mask:0xf')
    a('v_lshrrev_b32 v1, 4, v0\nv_lshlrev_b32 v1, 7, v1\nv_and_b32 v2, 3, v0\nv_lshlrev_b32 v2, 5, v2\nv_add_u32 v1, v1, v2')
    a('ds_write_b128 v1, v[70:73]\nds_write_b128 v1, v[74:77] offset:16')
    a('s_waitcnt lgkmcnt(0)\ns_barrier')
    a('v_cmp_gt_u32 vcc, 32, v0\ns_and_saveexec_b64 s[18:19], vcc\ns_cbranch_execz K1_END')
    a('v_lshlrev_b32 v1, 2, v0')
    for i in range(8):
        a(f'ds_read2_b32 {vr(20+2*i,2)}, v1 offset0:{64*i} offset1:{64*i+32}' if 64*i+32 < 256 else f'ds_read2st64_b32 {vr(20+2*i,2)}, v1 offset0:{i} offset1:{i}')
    a.lines = a.lines[:-8]
    for i in range(16):
        a(f'ds_read_b32 v{20+i}, v1 offset:{128*i}')
    a('s_waitcnt lgkmcnt(0)')
    for st in (8, 4, 2, 1):
        for i in range(st):
            a(f'v_add_f32 v{20+i}, v{20+i}, v{20+i+st}')
    bf16_round(a, 20, 20)
    a('s_cmp_ge_u32 s3, 54\ns_cselect_b32 s4, 54, 0\ns_sub_u32 s4, s3, s4\ns_sub_u32 s4, s4, 18\ns_cmp_lt_u32 s4, 18\ns_cselect_b32 s4, 1.0, 0')
    a('v_add_f32 v20, s4, v20')
    bf16_round(a, 20, 20)
    a(';MID')
    a('s_lshl_b32 s4, s3, 7\nv_add_u32 v1, s4, v1')
    a(f'global_store_dword v1, v20, s[6:7] offset:{MOD_OFF}')
    a('K1_END:\ns_endpgm')

    a('K1_LN:')
    a('s_load_dwordx2 s[8:9], s[0:1], 0')
    a(f's_sub_u32 s3, s2, {N_KGEN}')
    a('v_lshrrev_b32 v1, 4, v0\nv_mul_u32_u24 v1, 1152, v1\nv_and_b32 v2, 15, v0\nv_lshlrev_b32 v3, 3, v2\nv_add_u32 v1, v1, v3')
    a(f's_mul_i32 s4, s3, {16*1152}\nv_add_u32 v1, s4, v1')
    a('s_waitcnt lgkmcnt(0)')
    a(';MID 0')
    for i in range(9):
        a(f'global_load_dwordx2 {vr(8+2*i,2)}, v1, s[8:9] offset:{128*i}')
    a('v_lshlrev_b32 v2, 8, v2\nv_bfe_u32 v3, v0, 4, 2\nv_lshlrev_b32 v3, 6, v3\nv_add_u32 v2, v2, v3\nv_lshrrev_b32 v3, 6, v0\nv_lshlrev_b32 v3, 4, v3\nv_add_u32 v2, v2, v3')
    a.srd(12, 6, 2048*576*4, off=XT_OFF)
    a(f's_mul_i32 s5, s3, 36864')
    a('s_mov_b32 s17, 0xffff0000')
    X = 28
    for i in range(9):
        a(f's_waitcnt vmcnt({8-i})')
        for h in range(2):
            w = 8+2*i+h
            a(f'v_lshlrev_b32 v{X+4*i+2*h}, 16, v{w}\nv_and_b32 v{X+4*i+2*h+1}, s17, v{w}')
        if i == 0:
            a(f'v_pk_add_f32 v[4:5], {vr(X,2)}, {vr(X+2,2)}')
        else:
            a(f'v_pk_add_f32 v[4:5], v[4:5], {vr(X+4*i,2)}\nv_pk_add_f32 v[4:5], v[4:5], {vr(X+4*i+2,2)}')
    a(';MID')
    a('v_add_f32 v4, v4, v5')
    for sh in (8, 4, 2, 1):
        a(f'v_add_f32_dpp v4, v4, v4 row_ror:{sh} row_mask:0xf bank_mask:0xf')
    a(f'v_mul_f32 v4, {f2u(1/576)}, v4')
    D = 64
    for i in range(18):
        a(f'v_pk_add_f32 {vr(D+2*i,2)}, {vr(X+2*i,2)}, v[4:5] op_sel_hi:[1,0] neg_lo:[0,1] neg_hi:[0,1]')
        if i == 0: a(f'v_pk_mul_f32 v[6:7], {vr(D,2)}, {vr(D,2)}')
        else: a(f'v_pk_fma_f32 v[6:7], {vr(D+2*i,2)}, {vr(D+2*i,2)}, v[6:7]')
    a('v_add_f32 v6, v6, v7')
    for sh in (8, 4, 2, 1):
        a(f'v_add_f32_dpp v6, v6, v6 row_ror:{sh} row_mask:0xf bank_mask:0xf')
    a(f'v_mul_f32 v6, {f2u(1/576)}, v6')
    bf16_round(a, 6, 6)
    a(f'v_add_f32 v6, {f2u(1e-5)}, v6')
    bf16_round(a, 6, 6)
    a('v_sqrt_f32 v6, v6')
    bf16_round(a, 6, 6)
    a('v_rcp_f32 v6, v6')
    bf16_round(a, 5, 4)
    a('v_sub_f32 v4, v4, v5\nv_mul_f32 v4, v4, v6')
    for i in range(9):
        for h in range(2):
            k = 2*i+h
            a(f'v_pk_fma_f32 {vr(D+2*k,2)}, {vr(D+2*k,2)}, v[6:7], v[4:5] op_sel_hi:[1,0,0]')
        for j in range(4):
            a(f'v_cvt_pk_bf16_f32 v{X+4*i+j}, v{X+4*i+j}, v{D+4*i+j}')
    for i in range(9):
        b = X+4*i
        a(f'v_permlane32_swap_b32 v{b}, v{b+2}\nv_permlane32_swap_b32 v{b+1}, v{b+3}')
    a(';MID')
    for i in range(9):
        b = X+4*i
        a(f'v_permlane16_swap_b32 v{b}, v{b+1}\nv_permlane16_swap_b32 v{b+2}, v{b+3}')
        a(f'buffer_store_dwordx4 {vr(b,4)}, v2, s[12:15], s5 offen')
        if i < 8: a('s_add_u32 s5, s5, 4096')
    a(';MID')
    a('s_endpgm')

    a('K1_KGEN:')
    a('s_load_dwordx16 s[8:23], s[0:1], 8')
    a('s_lshl_b32 s3, s2, 10\nv_lshlrev_b32 v1, 2, v0\nv_add_u32 v1, s3, v1')
    a('v_lshrrev_b32 v3, 6, v0\ns_lshl_b32 s3, s2, 2\nv_add_u32 v3, s3, v3')
    a('v_lshlrev_b32 v2, 1, v3')
    a('s_waitcnt lgkmcnt(0)')
    a(';MID 0')
    a('global_load_ushort v14, v2, s[20:21]\nglobal_load_ushort v15, v2, s[22:23]')
    for i in range(6):
        a(f'global_load_dword v{8+i}, v1, s[{8+2*i}:{9+2*i}]')
    a('v_lshrrev_b32 v6, 6, v0\nv_mul_u32_u24 v6, 8448, v6\nv_and_b32 v4, 63, v0\nv_lshl_add_u32 v4, v4, 3, v6')
    a('v_and_b32 v7, 15, v0\nv_mul_u32_u24 v5, 528, v7\nv_add_u32 v5, v5, v6\nv_bfe_u32 v6, v0, 4, 2\nv_lshl_add_u32 v5, v6, 4, v5')
    a('v_mul_u32_u24 v3, 1536, v3')
    a('v_lshrrev_b32 v100, 1, v6\nv_lshlrev_b32 v100, 8, v100\nv_and_b32 v101, 1, v6\nv_lshl_add_u32 v100, v101, 3, v100\nv_lshl_add_u32 v100, v7, 4, v100\nv_add_u32 v100, v100, v3')
    a('v_lshrrev_b32 v101, 1, v6\nv_sub_u32 v102, 3, v101\nv_lshlrev_b32 v102, v102, v7\nv_lshl_add_u32 v102, v6, 7, v102\nv_add_u32 v102, v102, v3')
    a('v_mul_u32_u24 v101, 60, v101\nv_add_u32 v101, v101, v102')
    a('v_lshlrev_b32 v103, 5, v7\nv_lshl_add_u32 v103, v6, 3, v103\nv_add_u32 v103, v103, v3')
    a('s_mov_b32 s24, 0xffff0000')
    a(f's_mov_b32 s25, {LOG2E}\ns_mov_b32 s26, {INV2PI}')
    a('s_waitcnt vmcnt(6)')
    a('v_lshlrev_b32 v14, 16, v14\nv_mul_f32 v14, s25, v14\nv_exp_f32 v14, v14')
    bf16_round(a, 14, 14)
    a('v_lshlrev_b32 v15, 16, v15\nv_and_b32 v16, 63, v0\nv_cmp_eq_u32 vcc, 0, v16\nv_cndmask_b32 v88, 0, v15, vcc\nv_mov_b32 v89, 0\nv_mov_b32 v90, 0\nv_mov_b32 v91, 0')
    a('v_mul_f32 v16, s25, v14\nv_mul_f32 v17, s26, v14')
    a('s_waitcnt vmcnt(0)')
    a(';MID')
    for i in range(6):
        a(f'v_lshlrev_b32 v{18+2*i}, 16, v{8+i}\nv_and_b32 v{19+2*i}, s24, v{8+i}')
    a('v_pk_mul_f32 v[18:19], v[18:19], v[16:17] op_sel_hi:[1,0]')
    a('v_pk_mul_f32 v[20:21], v[20:21], v[16:17] op_sel:[0,1] op_sel_hi:[1,1]')
    a('v_pk_mul_f32 v[22:23], v[22:23], v[14:15] op_sel_hi:[1,0]')
    a('v_pk_mul_f32 v[24:25], v[24:25], v[14:15] op_sel_hi:[1,0]')
    T0, T1 = 8, 10
    def cmul(d, x, y):
        a(f'v_pk_mul_f32 {vr(T0,2)}, {vr(x+2,2)}, {vr(y+2,2)}')
        a(f'v_pk_mul_f32 {vr(T1,2)}, {vr(x+2,2)}, {vr(y,2)}')
        a(f'v_pk_fma_f32 {vr(d+2,2)}, {vr(x,2)}, {vr(y+2,2)}, {vr(T1,2)}')
        a(f'v_pk_fma_f32 {vr(d,2)}, {vr(x,2)}, {vr(y,2)}, {vr(T0,2)} neg_lo:[0,0,1] neg_hi:[0,0,1]')
    CV = [12, 16]
    cnt = [0]
    def emit(x, row, neg=False):
        t = (12, 14)[cnt[0] & 1]; cnt[0] += 1
        n = '-' if neg else ''
        a(f'v_cvt_pk_bf16_f32 v{t}, v{x}, v{x+1}')
        a(f'v_cvt_pk_bf16_f32 v{t+1}, {n}v{x+2}, {n}v{x+3}')
        a(f'ds_write_b64 v4, {vr(t,2)} offset:{row*528}')
    W = 30; P1 = 34; E8 = 38; Q1 = 42; R = 46; P2 = 22; P4 = 26; Q = 50
    cmul(W, 22, 26)
    def cexp(d, scale):
        if scale == 1.0:
            a(f'v_exp_f32 v{T0}, v18\nv_exp_f32 v{T0+1}, v19\nv_fract_f32 v{T1}, v20\nv_fract_f32 v{T1+1}, v21')
        else:
            a(f's_mov_b32 s27, {f2u(scale)}')
            a(f'v_mul_f32 v{T0}, s27, v18\nv_mul_f32 v{T0+1}, s27, v19\nv_mul_f32 v{T1}, s27, v20\nv_mul_f32 v{T1+1}, s27, v21')
            a(f'v_exp_f32 v{T0}, v{T0}\nv_exp_f32 v{T0+1}, v{T0+1}\nv_fract_f32 v{T1}, v{T1}\nv_fract_f32 v{T1+1}, v{T1+1}')
        a(f'v_cos_f32 v{d}, v{T1}\nv_cos_f32 v{d+1}, v{T1+1}\nv_sin_f32 v{d+2}, v{T1}\nv_sin_f32 v{d+3}, v{T1+1}')
        a(f'v_pk_mul_f32 {vr(d,2)}, {vr(d,2)}, {vr(T0,2)}\nv_pk_mul_f32 {vr(d+2,2)}, {vr(d+2,2)}, {vr(T0,2)}')
    cexp(E8, 8.0); cexp(P1, 1.0); cexp(Q1, 128.0)
    VF = 56
    UF = 104
    a(';MID')
    for b in range(16):
        emit(W, b, neg=True)
        if b < 15: cmul(W, W, E8)
    for kk in range(8):
        a(f'ds_read_b128 {vr(VF+4*kk,4)}, v5 offset:{64*kk}')
    def readU():
        for kk in range(8):
            a(f'ds_read_b128 {vr(UF+4*kk,4)}, v5 offset:{64*kk}')
    def mm(acc, swap, first_zero):
        for kk in range(8):
            A, B = (VF+4*kk, UF+4*kk) if swap else (UF+4*kk, VF+4*kk)
            c = '0' if (kk == 0 and first_zero) else vr(acc, 4)
            a(f'v_mfma_f32_16x16x32_bf16 {vr(acc,4)}, {vr(A,4)}, {vr(B,4)}, {c}')
    a(';MID')
    a('v_mov_b32 v12, 0x3f803f80\nv_mov_b32 v13, 0\nds_write_b64 v4, v[12:13]'); cnt[0] = 1
    emit(P1, 1)
    cmul(P2, P1, P1); emit(P2, 2)
    cmul(R, P2, P1); emit(R, 3)
    cmul(P4, R, P1); emit(P4, 4)
    cmul(R, P4, P1); emit(R, 5)
    cmul(R, R, P1); emit(R, 6)
    cmul(R, R, P1); emit(R, 7)
    emit(Q1, 8)
    cmul(R, Q1, P1); emit(R, 9)
    for c in range(2, 8):
        cmul(R, R, P1); emit(R, 8+c)
    readU()
    cmul(Q, Q1, Q1)
    for aa in (2, 3):
        emit(Q, 4*(aa-2))
        cmul(R, Q, P2); emit(R, 4*(aa-2)+1)
        cmul(R, R, P2); emit(R, 4*(aa-2)+2)
        cmul(R, R, P2); emit(R, 4*(aa-2)+3)
        cmul(Q, Q, Q1)
        if aa == 2:
            a('s_waitcnt lgkmcnt(4)')
            mm(88, False, False)
    for aa in range(4, 8):
        emit(Q, 8+2*(aa-4))
        cmul(R, Q, P4); emit(R, 8+2*(aa-4)+1)
        cmul(Q, Q, Q1)
    readU()
    for aa in range(8, 17):
        emit(Q, aa-8)
        if aa < 16: cmul(Q, Q, Q1)
        if aa == 11:
            a('s_waitcnt lgkmcnt(4)')
            mm(92, False, True)
    readU()
    a('v_cvt_pk_bf16_f32 v88, v88, v89\nv_cvt_pk_bf16_f32 v89, v90, v91')
    a(f's_add_u32 s6, s6, {KT_OFF}\ns_addc_u32 s7, s7, 0')
    a('global_store_dwordx2 v100, v[88:89], s[6:7]')
    a('v_cvt_pk_bf16_f32 v92, v92, v93\nv_cvt_pk_bf16_f32 v93, v94, v95')
    a('global_store_dword v102, v92, s[6:7] offset:512\nglobal_store_dword v101, v93, s[6:7] offset:516')
    a('s_waitcnt lgkmcnt(0)')
    mm(96, True, True)
    a('v_cvt_pk_bf16_f32 v96, v96, v97\nv_cvt_pk_bf16_f32 v97, v98, v99')
    a('global_store_dwordx2 v103, v[96:97], s[6:7] offset:1024')
    a(';MID')
    a('s_endpgm')
    a.end_kernel(name, 136, sgpr=40)


def gen_k2(a, wpf=2, wdpf=True):
    name = 'k2_kernel'
    HB = 4608
    CS = 4160
    WB = HB + 4*CS
    a.launch(name, 256 if wpf else 144, 256, lds=4*WB)
    a.kernel(name)
    a('s_cmp_ge_u32 s2, 144\ns_cbranch_scc1 K2_SIDE')
    a('s_load_dwordx2 s[6:7], s[0:1], 136')
    a('v_lshrrev_b32 v1, 6, v0')
    a('v_readfirstlane_b32 s3, v1')
    a('v_and_b32 v2, 63, v0\nv_and_b32 v3, 15, v0\nv_bfe_u32 v4, v0, 4, 2')
    a('s_lshl_b32 s4, s2, 2\ns_add_u32 s4, s4, s3')
    a(f's_mul_i32 s5, s3, {WB}')
    a('v_mul_u32_u24 v5, 36864, v3\nv_lshl_add_u32 v5, v4, 4, v5')
    a('v_lshlrev_b32 v6, 3, v2\nv_lshlrev_b32 v7, 2, v2')
    a('s_lshl_b32 s16, s4, 6\ns_mul_i32 s17, s4, 1536\ns_lshl_b32 s18, s4, 2')
    a('s_waitcnt lgkmcnt(0)')
    a(';MID')
    a('s_add_u32 s20, s6, s18\ns_addc_u32 s21, s7, 0')
    a(f's_load_dword s22, s[20:21], {MOD_OFF}\ns_load_dword s23, s[20:21], {MOD_OFF+576*4}\ns_load_dword s24, s[20:21], {MOD_OFF+2*576*4}')
    a.srd(8, 6, 576*1536, off=KT_OFF)
    a.srd(12, 6, 2048*576*4, off=XT_OFF)
    a('buffer_load_dwordx2 v[8:9], v6, s[8:11], s17 offen')
    a('buffer_load_dwordx2 v[10:11], v7, s[8:11], s17 offen offset:512')
    a('buffer_load_dwordx2 v[12:13], v7, s[8:11], s17 offen offset:768')
    a('buffer_load_dwordx2 v[14:15], v7, s[8:11], s17 offen offset:1024')
    X = 32
    for u in range(8):
        a(f'buffer_load_dwordx4 {vr(X+4*u,4)}, v5, s[12:15], s16 offen')
        if u < 7: a(f's_add_u32 s16, s16, {16*36864}')
    a('v_mov_b32 v16, 0\nv_mov_b32 v17, 0')
    a('v_add_u32 v6, s5, v6')
    a('ds_write_b64 v6, v[16:17] offset:4096')
    a(f'v_lshrrev_b32 v18, 2, v3\nv_mul_u32_u24 v18, {CS}, v18\nv_and_b32 v19, 3, v3\nv_lshl_add_u32 v18, v19, 3, v18\nv_add_u32 v18, s5, v18')
    a(f'ds_write_b64 v18, v[16:17] offset:{HB}')
    a('v_lshlrev_b32 v20, 4, v2\nv_add_u32 v20, s5, v20')
    a('v_lshlrev_b32 v21, 5, v2\nv_add_u32 v21, s5, v21')
    a('v_lshlrev_b32 v24, 5, v3\nv_sub_u32 v24, s5, v24\nv_lshlrev_b32 v25, 3, v4\nv_sub_u32 v22, v24, v25\nv_add_u32 v22, 504, v22')
    a('v_lshl_add_u32 v23, v4, 4, v24\nv_add_u32 v23, 480, v23')
    a(f'v_sub_u32 v25, 3, v3\nv_and_b32 v25, 3, v25\nv_mul_u32_u24 v26, {CS+2}, v25\nv_lshl_add_u32 v26, v3, 1, v26\nv_lshl_add_u32 v26, v4, 4, v26\nv_add_u32 v26, s5, v26\nv_add_u32 v26, {HB+2}, v26')
    a('s_mov_b32 s25, 0x01000100\ns_mov_b32 s26, 0x03020302\ns_mov_b32 s27, 0xffff0000')
    C0 = HB + 32
    a('s_waitcnt vmcnt(8)')
    a(';MID')
    a(f'ds_write_b64 v6, v[8:9] offset:{C0}')
    a('v_perm_b32 v16, v10, v10, s25\nv_alignbit_b32 v17, v11, v10, 16')
    a(f'ds_write_b64 v6, v[16:17] offset:{C0+512}')
    a('v_perm_b32 v64, v12, v12, s25\nv_mov_b32 v65, v12\nv_perm_b32 v66, v12, v12, s26\nv_perm_b32 v67, v13, v13, s25')
    a(f'ds_write_b128 v20, v[64:67] offset:{C0+1024}')
    a('v_perm_b32 v68, v14, v14, s25\nv_perm_b32 v69, v14, v14, s25\nv_mov_b32 v70, v14\nv_perm_b32 v71, v14, v14, s26')
    a('v_perm_b32 v72, v14, v14, s26\nv_perm_b32 v73, v14, v14, s26\nv_perm_b32 v74, v15, v15, s25\nv_perm_b32 v75, v15, v15, s25')
    a(f'ds_write_b128 v21, v[68:71] offset:{C0+2048}\nds_write_b128 v21, v[72:75] offset:{C0+2048+16}')
    for t in range(4):
        b = 80 + 8*t
        a(f'ds_read_b64 {vr(b+2,2)}, v20 offset:{C0+1024*t-8}\nds_read_b128 {vr(b+4,4)}, v20 offset:{C0+1024*t}')
    a('s_waitcnt lgkmcnt(0)')
    a('v_mov_b32 v28, s23')
    a('v_mov_b32 v30, s22')
    for t in range(4):
        b = 80 + 8*t; o = 112 + 12*(t & 1)
        for j in range(4): a(f'v_alignbit_b32 v{o+j}, v{b+4+j}, v{b+3+j}, 16')
        a(f'ds_write_b128 v20, {vr(o,4)} offset:{C0+CS+1024*t}')
        a(f'v_pk_mov_b32 {vr(o+4,2)}, {vr(b+2,2)}, {vr(b+4,2)} op_sel:[1,0]\nv_pk_mov_b32 {vr(o+6,2)}, {vr(b+4,2)}, {vr(b+6,2)} op_sel:[1,0]')
        a(f'ds_write_b128 v20, {vr(o+4,4)} offset:{C0+2*CS+1024*t}')
        for j in range(4): a(f'v_alignbit_b32 v{o+8+j}, v{b+3+j}, v{b+2+j}, 16')
        a(f'ds_write_b128 v20, {vr(o+8,4)} offset:{C0+3*CS+1024*t}')
    a(';MID')
    for u in range(8):
        a(f's_waitcnt vmcnt({7-u})')
        t = 64 + 8*(u & 1)
        for j in range(4): a(f'v_and_b32 v{t+j}, s27, v{X+4*u+j}')
        a(f'v_pk_fma_f32 {vr(t,2)}, {vr(t,2)}, v[28:29], v[30:31] op_sel_hi:[1,0,0]\nv_pk_fma_f32 {vr(t+2,2)}, {vr(t+2,2)}, v[28:29], v[30:31] op_sel_hi:[1,0,0]')
        a(f'v_cvt_pk_bf16_f32 v{t+4}, v{t+3}, v{t+2}\nv_cvt_pk_bf16_f32 v{t+5}, v{t+1}, v{t}')
        a(f'ds_write_b64 v22, {vr(t+4,2)} offset:{(7-u)*512}')
    ACC = 64
    FR = [96, 160]
    def reads(i):
        f = FR[i & 1]; L = []
        for k in range(8):
            L.append(f'ds_read_b128 {vr(f+32+4*k,4)}, v23 offset:{64*i+512*(7-k)}')
            L.append(f'ds_read_b64 {vr(f+4*k,2)}, v26 offset:{64*i+512*k}')
            L.append(f'ds_read_b64 {vr(f+4*k+2,2)}, v26 offset:{64*i+512*k+8}')
        return L
    a(';MID')
    for s in reads(0): a(s)
    a('v_mul_u32_u24 v5, 18432, v3\nv_lshl_add_u32 v5, v4, 3, v5')
    a.srd(12, 6, 2048*576*2, off=X1T_OFF)
    a('s_lshl_b32 s16, s4, 5')
    for i in range(8):
        a('s_waitcnt lgkmcnt(0)')
        if i == 0: a(';MID')
        f = FR[i & 1]
        fill = reads(i+1) if i < 7 else []
        if i == 0: fill = fill + [f'v_lshlrev_b32 v{X+j}, 16, v{X+j}' for j in range(12)]
        if i == 1: fill = fill + [f'v_lshlrev_b32 v{X+j}, 16, v{X+j}' for j in range(12, 24)]
        if i == 2: fill = fill + [f'v_lshlrev_b32 v{X+j}, 16, v{X+j}' for j in range(24, 32)]
        first = set()
        for u in range(8):
            for al in range(u+1):
                be = u - al
                c = '0' if (i == 0 and al == 0) else vr(ACC+4*u, 4)
                a(f'v_mfma_f32_16x16x32_bf16 {vr(ACC+4*u,4)}, {vr(f+4*al,4)}, {vr(f+32+4*be,4)}, {c}')
                if fill: a(fill.pop(0))
                if i == 7 and fill: a(fill.pop(0))
            if i == 7 and u >= 2:
                v = u - 2
                fill += epi2(v, ACC, X)
    a(';MID')
    for v in (6, 7): fill += epi2(v, ACC, X)
    for s in fill: a(s)
    a(';MID')
    a('K2_END:\ns_endpgm')
    a('K2_SIDE:')
    if wpf:
        a('s_cmp_ge_u32 s2, 256\ns_cbranch_scc1 K2_END2')
        a('s_load_dwordx4 s[4:7], s[0:1], 80\ns_load_dwordx2 s[8:9], s[0:1], 96')
        a('v_lshrrev_b32 v1, 6, v0\nv_readfirstlane_b32 s3, v1\nv_and_b32 v0, 63, v0')
        NL = 18 if wpf == 3 else 9
        R = 64 // NL
        NI = -(-576 // (R*56))
        a(f'v_mul_u32_u24 v1, {65536//NL+1}, v0\nv_lshrrev_b32 v1, 16, v1\nv_mul_u32_u24 v2, {NL}, v1\nv_sub_u32 v2, v0, v2\nv_mul_u32_u24 v1, 9216, v1\nv_lshl_add_u32 v1, v2, 7, v1')
        a('s_sub_u32 s10, s2, 144\ns_lshr_b32 s11, s10, 3\ns_lshl_b32 s11, s11, 2\ns_add_u32 s11, s11, s3')
        a(f's_mul_i32 s12, s11, {NI*R*9216}')
        if wpf == 3: a('s_bfe_u32 s13, s2, 0x20001\ns_mul_i32 s13, s13, 2304')
        else: a('s_and_b32 s13, s2, 7\ns_mul_i32 s13, s13, 1152')
        a('s_add_u32 s12, s12, s13')
        a('s_lshl_b32 s14, s10, 2\ns_add_u32 s14, s14, s3\ns_mul_i32 s14, s14, 16384\nv_lshlrev_b32 v2, 7, v0')
        a('s_waitcnt lgkmcnt(0)')
        a.srd(16, 4, 576*9216); a.srd(20, 6, 576*9216); a.srd(24, 8, 4608*1152)
        for c in range(NI):
            a(f'buffer_load_dword v{4+2*c}, v1, s[16:19], s12 offen\nbuffer_load_dword v{5+2*c}, v1, s[20:23], s12 offen\ns_add_u32 s12, s12, {R*9216}')
        if wdpf:
            a('buffer_load_dword v30, v2, s[24:27], s14 offen\ns_add_u32 s14, s14, 8192\nbuffer_load_dword v31, v2, s[24:27], s14 offen')
        a('s_waitcnt vmcnt(0)')
    a('K2_END2:\ns_endpgm')
    a.end_kernel(name, 224, sgpr=40)

def epi2(u, ACC, X):
    L = []
    for j in range(4): L.append(f'v_fma_f32 v{X+4*u+j}, v{ACC+4*u+j}, s24, v{X+4*u+j}')
    L.append(f'v_cvt_pk_bf16_f32 v{X+4*u}, v{X+4*u}, v{X+4*u+1}')
    L.append(f'v_cvt_pk_bf16_f32 v{X+4*u+1}, v{X+4*u+2}, v{X+4*u+3}')
    L.append(f'buffer_store_dwordx2 {vr(X+4*u,2)}, v5, s[12:15], s16 offen')
    if u < 7: L.append(f's_add_u32 s16, s16, {16*18432}')
    return L


def gen_k3(a, pack=False, fused=False):
    name = 'k3_kernel'
    a.launch(name, 244 if pack else 128, 576, lds=86016 if pack else 18432+1152)
    a.kernel(name)
    a('s_cmp_ge_u32 s2, 128\ns_cbranch_scc1 ' + ('K3_SIDE' if pack else 'K3_END'))
    a('s_load_dwordx2 s[6:7], s[0:1], 136')
    a('v_lshrrev_b32 v1, 6, v0')
    a('v_readfirstlane_b32 s3, v1')
    a('v_and_b32 v2, 63, v0\nv_lshlrev_b32 v3, 4, v2')
    a('v_bfe_u32 v4, v0, 4, 2\nv_lshlrev_b32 v4, 4, v4\nv_lshl_add_u32 v4, v1, 8, v4')
    a('s_lshl_b32 s4, s3, 11\ns_mov_b32 m0, s4')
    a('s_mul_i32 s5, s2, 18432\ns_add_u32 s5, s5, s4')
    a('v_and_b32 v66, 15, v0\nv_lshlrev_b32 v66, 2, v66\nv_bfe_u32 v5, v0, 5, 1\nv_lshl_add_u32 v5, v5, 6, v66\nv_lshl_add_u32 v5, v1, 7, v5')
    a('v_lshl_add_u32 v2, v2, 3, s4')
    a('s_waitcnt lgkmcnt(0)')
    a(';MID')
    a.srd(8, 6, 2048*576*2, off=X1T_OFF)
    a('buffer_load_dwordx4 v3, s[8:11], s5 offen lds\nbuffer_load_dwordx4 v3, s[8:11], s5 offen offset:1024 lds')
    a(f's_add_u32 s12, s6, {MOD_OFF + 3*576*4}\ns_addc_u32 s13, s7, 0')
    for q in range(4):
        a(f'global_load_dwordx4 {vr(32+4*q,4)}, v4, s[12:13] offset:{64*q}')
        a(f'global_load_dwordx4 {vr(48+4*q,4)}, v4, s[12:13] offset:{576*4+64*q}')
    a.srd(8, 6, 2048*576*2, off=H2F_OFF)
    a('s_mov_b32 s17, 0xffff0000')
    a(';MID')
    a('s_waitcnt vmcnt(8)')
    a(';MID')
    for q in range(4):
        a(f'ds_read_b64_tr_b16 {vr(8+2*q,2)}, v2 offset:{512*q}')
    for q in range(4):
        a(f's_waitcnt lgkmcnt({3-q})')
        for h in range(2):
            a(f'v_lshlrev_b32 v{16+4*q+2*h}, 16, v{8+2*q+h}\nv_and_b32 v{17+4*q+2*h}, s17, v{8+2*q+h}')
        for h in range(2):
            x = vr(16+4*q+2*h, 2)
            if q == 0 and h == 0:
                a(f'v_pk_mul_f32 v[64:65], {x}, {x}')
            elif q == 0:
                a(f'v_pk_add_f32 v[6:7], {vr(16,2)}, {x}\nv_pk_fma_f32 v[64:65], {x}, {x}, v[64:65]')
            else:
                a(f'v_pk_add_f32 v[6:7], v[6:7], {x}\nv_pk_fma_f32 v[64:65], {x}, {x}, v[64:65]')
    a('v_add_f32 v6, v6, v7\nv_add_f32 v64, v64, v65')
    a('v_permlane32_swap_b32 v6, v64\nv_add_f32 v6, v6, v64\nv_mov_b32 v7, v6\nv_permlane16_swap_b32 v6, v7\nv_add_f32 v6, v6, v7')
    a('ds_write_b32 v5, v6 offset:18432')
    a('s_waitcnt lgkmcnt(0)\ns_barrier')
    a(';MID')
    a('v_add_u32 v66, 18432, v66')
    for w in range(8):
        a(f'ds_read2_b32 {vr(68+2*w,2)}, v66 offset0:{32*w} offset1:{32*w+16}')
    a('v_add_u32 v66, 1024, v66\nds_read2_b32 v[6:7], v66 offset0:0 offset1:16')
    a('s_waitcnt lgkmcnt(1)')
    for st in (4, 2, 1):
        for w in range(st):
            a(f'v_pk_add_f32 {vr(68+2*w,2)}, {vr(68+2*w,2)}, {vr(68+2*(w+st),2)}')
    a('s_waitcnt lgkmcnt(0)')
    a('v_pk_add_f32 v[6:7], v[6:7], v[68:69]')
    a(f'v_mul_f32 v6, {f2u(1/576)}, v6\nv_mul_f32 v7, {f2u(1/576)}, v7')
    a('v_fma_f32 v7, -v6, v6, v7\nv_max_f32 v7, 0, v7')
    bf16_round(a, 7, 7)
    a(f'v_add_f32 v7, {f2u(1e-5)}, v7')
    bf16_round(a, 7, 7)
    a('v_sqrt_f32 v7, v7')
    bf16_round(a, 7, 7)
    a('v_rcp_f32 v7, v7')
    bf16_round(a, 6, 6)
    a('v_mul_f32 v6, v6, v7')
    a(';MID')
    a('s_waitcnt vmcnt(0)')
    a(';MID')
    for k in range(8):
        x = vr(16+2*k, 2)
        a(f'v_pk_fma_f32 {x}, {x}, v[6:7], v[6:7] op_sel:[0,1,0] op_sel_hi:[1,1,0] neg_lo:[0,0,1] neg_hi:[0,0,1]')
    for k in range(8):
        x = vr(16+2*k, 2)
        a(f'v_pk_fma_f32 {x}, {x}, {vr(48+2*k,2)}, {vr(32+2*k,2)}')
    for k in range(8):
        a(f'v_cvt_pk_bf16_f32 v{8+k}, v{16+2*k}, v{17+2*k}')
    a('buffer_store_dwordx4 v[8:11], v3, s[8:11], s5 offen\nbuffer_store_dwordx4 v[12:15], v3, s[8:11], s5 offen offset:1024')
    a(';MID')
    a('K3_END:\ns_endpgm')
    if pack:
        a('K3_SIDE:')
        gen_pack(a, fused)
    a.end_kernel(name, 84, sgpr=40)


class VmTrack:
    def __init__(self): self.n = 0; self.idx = {}; self.done = -1
    def issue(self, tag=None):
        if tag is not None: self.idx[tag] = self.n
        self.n += 1
        assert self.n - 1 - self.done <= 63, ('too many outstanding', tag)
    def wait_for(self, tags):
        k = max(self.idx[t] for t in tags)
        if k <= self.done: return None
        self.done = k
        c = self.n - 1 - k
        assert c <= 63
        return f's_waitcnt vmcnt({c})'

def gen_k4(a, store_flags='sc1', D=4, pre_steps=2, spacing=5, look2=2.0, grp=3, xmap=2, wpair=False, maxv=2):
    name = 'k4_kernel'
    NSLOT = 20
    a.launch(name, 256, 256, lds=NSLOT*8192)
    a.kernel(name)
    a('s_load_dwordx4 s[4:7], s[0:1], 80')
    a('s_load_dwordx2 s[8:9], s[0:1], 136')
    a('s_cmp_ge_u32 s2, 256\ns_cbranch_scc1 K4_END')
    a('v_lshrrev_b32 v1, 6, v0')
    a('v_readfirstlane_b32 s3, v1')
    if xmap == 3:
        a('s_and_b32 s10, s2, 1\ns_lshl_b32 s10, s10, 2\ns_bfe_u32 s11, s2, 0x20003\ns_add_u32 s10, s10, s11')
        a('s_and_b32 s11, s2, 6\ns_bfe_u32 s12, s2, 0x10005\ns_add_u32 s11, s11, s12')
    elif xmap == 2:
        a('s_bfe_u32 s10, s2, 0x30003\ns_and_b32 s11, s2, 7')
    elif xmap == 4:
        a('s_and_b32 s10, s2, 3\ns_lshl_b32 s10, s10, 1\ns_bfe_u32 s11, s2, 0x10003\ns_add_u32 s10, s10, s11')
        a('s_and_b32 s11, s2, 4\ns_bfe_u32 s12, s2, 0x20004\ns_add_u32 s11, s11, s12')
    a('s_lshr_b32 s12, s2, 6')
    a('s_mul_i32 s13, s11, 9\ns_lshl_b32 s14, s12, 1\ns_add_u32 s14, s14, s13')
    a('s_add_u32 s13, s13, 8')
    a('s_lshl_b32 s15, s10, 4\ns_lshl_b32 s16, s3, 2\ns_add_u32 s15, s15, s16')
    a('s_mul_i32 s40, s15, 18432')
    a('s_lshl_b32 s44, s14, 7')
    a('s_lshl_b32 s46, s3, 11')
    H = 8; WF = 40; ACC = 64; NB = 6
    HV = [1, ACC+162, ACC+163, ACC+164]
    a('v_and_b32 v0, 63, v0\nv_lshlrev_b32 v1, 4, v0')
    for m in range(1, 4): a(f'v_add_u32 v{HV[m]}, {m*18432}, v1')
    a('v_lshrrev_b32 v2, 3, v0\nv_and_b32 v3, 6, v2\nv_and_b32 v4, 7, v0\nv_xor_b32 v3, v3, v4\nv_lshlrev_b32 v3, 4, v3')
    a('s_lshl_b32 s16, s3, 3\nv_add_u32 v2, s16, v2\nv_mul_u32_u24 v2, 9216, v2\nv_add_u32 v2, v2, v3')
    a(f's_mov_b32 s22, {576*9216}\ns_mov_b32 s23, 0x00020000\ns_mov_b32 s26, {576*9216+1024}\ns_mov_b32 s27, 0x00020000\ns_mov_b32 s30, {2048*576*2}\ns_mov_b32 s31, 0x00020000')
    a('s_mov_b32 m0, s46')
    a('s_waitcnt lgkmcnt(0)')
    a('s_mov_b32 s20, s4\ns_mov_b32 s21, s5\ns_sub_u32 s24, s6, 1024\ns_subb_u32 s25, s7, 0')
    a(f's_add_u32 s28, s8, {H2F_OFF}\ns_addc_u32 s29, s9, 0')
    vm = VmTrack()
    def hreg(m, kk):
        idx = kk*4 + m
        return f'a[{4*idx}:{4*idx+3}]' if idx < 64 else vr(H + 4*(idx-64), 4)
    units = []
    for k in range(18): units.append(dict(ph=1, k=k, size=8192))
    for ph in (2, 3):
        for u in range(9): units.append(dict(ph=ph, k=u, size=8192))
    for u in range(9): units.append(dict(ph=4, k=u, size=4096))
    pos = 0
    for u in units:
        if pos + u['size'] > NSLOT*8192: pos = 0
        u['lds'] = pos; pos += u['size']
    def dma_ops(ui):
        u = units[ui]; L = []
        if u['ph'] == 4:
            if u['k']: L.append(('s', f's_add_u32 s45, s45, {64*9216}'))
            L.append(('s', f's_add_u32 m0, s47, {u["lds"]}'))
            L.append(('v', f'buffer_load_dwordx4 v2, s[36:39], s45 offen lds', ('dma', ui)))
            return L
        vo = 'v2' if u['ph'] == 1 else 'v5'
        if ui:
            if u['k'] == 0: d = (128 - 17*32*9216) if u['ph'] == 2 else (64 - 8*64*9216)
            else: d = (32 if u['ph'] == 1 else 64)*9216
            L.append(('s', f's_add_u32 s44, s44, {d & 0xffffffff}'))
            L.append(('s', f's_add_u32 m0, s46, {u["lds"]}'))
        L.append(('v', f'buffer_load_dwordx4 {vo}, s[20:23], s44 offen lds', None))
        L.append(('v', f'buffer_load_dwordx4 {vo}, s[24:27], s44 offen offset:1024 lds', ('dma', ui)))
        return L
    def h_ops(kk):
        L = []
        if kk and kk % 4 == 0: L.append(('s', 's_add_u32 s40, s40, 4096'))
        for m in range(4):
            L.append(('v', f'buffer_load_dwordx4 {hreg(m,kk)}, v{HV[m]}, s[28:31], s40 offen offset:{(kk%4)*1024}', ('h', kk, m)))
        return L
    def emit_op(op):
        if op[0] == 'v': vm.issue(op[2])
        a(op[1])
    for k in range(pre_steps):
        for op in dma_ops(k) + h_ops(k): emit_op(op)
    a(f's_mul_i32 s41, s15, {144*1024}')
    a('s_lshl_b32 s16, s14, 11\ns_add_u32 s42, s41, s16')
    a('s_lshl_b32 s16, s13, 11\ns_add_u32 s43, s41, s16\ns_lshr_b32 s16, s12, 1\ns_lshl_b32 s16, s16, 10\ns_add_u32 s43, s43, s16\ns_and_b32 s16, s12, 1\ns_lshl_b32 s16, s16, 3\ns_add_u32 s43, s43, s16')
    a('s_lshl_b32 s45, s13, 7\ns_lshl_b32 s16, s12, 5\ns_add_u32 s45, s45, s16')
    a(f's_lshr_b32 s16, s3, 1\ns_mul_i32 s16, s16, {32*9216}\ns_add_u32 s45, s45, s16')
    a('s_lshl_b32 s47, s3, 10')
    a.srd(32, 8, 2048*4608*2, off=ACT_OFF)
    a('s_bitcmp1_b32 s3, 0\ns_cselect_b32 s36, s6, s4\ns_cselect_b32 s37, s7, s5')
    a(f's_mov_b32 s38, {576*9216}\ns_mov_b32 s39, 0x00020000')
    a('v_lshrrev_b32 v5, 2, v0\nv_lshrrev_b32 v3, 3, v0\nv_and_b32 v3, 2, v3\nv_and_b32 v4, 3, v0\nv_xor_b32 v3, v3, v4\nv_lshlrev_b32 v3, 4, v3')
    a('s_lshl_b32 s16, s3, 4\nv_add_u32 v5, s16, v5\nv_mul_u32_u24 v5, 9216, v5\nv_add_u32 v5, v5, v3')
    TR1 = [3, 4, 6, 7]
    t0, t1 = ACC+160, ACC+161
    a(f'v_bfe_u32 v{t0}, v0, 2, 3\nv_lshlrev_b32 v{t0}, 7, v{t0}\nv_and_b32 v{t1}, 3, v0\nv_lshl_add_u32 v{t0}, v{t1}, 3, v{t0}\nv_lshrrev_b32 v{t1}, 5, v0\nv_lshl_add_u32 v{t0}, v{t1}, 11, v{t0}\nv_bfe_u32 v{t1}, v0, 3, 2')
    for t in range(4):
        a(f'v_xor_b32 v{TR1[t]}, {t}, v{t1}\nv_lshl_add_u32 v{TR1[t]}, v{TR1[t]}, 5, v{t0}')
    frags = []
    for k in range(18):
        for t in range(4):
            for mat in range(2):
                frags.append(dict(unit=k, key=('p1', t), off=units[k]['lds'] + mat*1024, hs=4096, slot=t, mat=mat, kk=k))
    for ph, slots in ((2, (4, 5)), (3, (0, 1))):
        for k in range(18):
            ui = 18 + (ph-2)*9 + k//2
            for t in range(2):
                for mat in range(2):
                    frags.append(dict(unit=ui, key=('p2', t), off=units[ui]['lds'] + mat*1024 + (k & 1)*4096, hs=2048, slot=slots[t], mat=mat, kk=k))
    for k in range(18):
        ui = 36 + k//2
        for mat in range(2):
            frags.append(dict(unit=ui, key=('p4', 0), off=units[ui]['lds'] + (k & 1)*2048 + mat*1024, hs=512, slot=2, mat=mat, kk=k))
    NF = len(frags)
    areg = {('p1', t): TR1[t] for t in range(4)}
    abase = {k: 0 for k in areg}
    def addr_setup(key):
        if key == ('p2', 0):
            areg[('p2', 0)] = 3; areg[('p2', 1)] = 4; abase[('p2', 0)] = 0; abase[('p2', 1)] = 0
            return ['v_lshrrev_b32 v3, 2, v0', 'v_lshlrev_b32 v3, 6, v3', 'v_and_b32 v4, 3, v0', 'v_lshl_add_u32 v3, v4, 3, v3',
                    'v_bfe_u32 v4, v0, 4, 1', 'v_lshl_add_u32 v3, v4, 5, v3', 'v_xor_b32 v4, 32, v3']
        if key == ('p4', 0):
            areg[key] = 6; abase[key] = 0
            return ['v_lshlrev_b32 v6, 3, v0']
        return []
    def read_ops(j):
        f = frags[j]; L = []
        if f['key'] not in areg: L += [('a', s) for s in addr_setup(f['key'])]
        r = areg[f['key']]
        lo = f['off'] - abase[f['key']]
        if lo < 0 or lo + f['hs'] > 65535:
            nb = f['off'] if f['off'] >= 49152 else 0
            L.append(('a', f'v_add_u32 v{r}, {(nb - abase[f["key"]]) & 0xffffffff}, v{r}'))
            abase[f['key']] = nb; lo = f['off'] - nb
        b = WF + 4*(j % NB)
        L.append(('d', f'ds_read_b64_tr_b16 {vr(b,2)}, v{r} offset:{lo}'))
        L.append(('d', f'ds_read_b64_tr_b16 {vr(b+2,2)}, v{r} offset:{lo+f["hs"]}'))
        return L
    def acc(slot, mat, m): return ACC + 32*slot + 16*mat + 4*m
    def epi_pair(sa_, sb_, soff_reg, fragoff):
        L = []
        for m in range(4):
            for s in (sa_, sb_):
                g, u = acc(s, 0, m), acc(s, 1, m)
                for r in range(4): L.append(('a', f'v_max_f32 v{g+r}, 0, v{g+r}'))
                for r in range(4): L.append(('a', f'v_mul_f32 v{g+r}, v{g+r}, v{u+r}'))
            o = acc(sa_, 1, m); ga_, gb_ = acc(sa_, 0, m), acc(sb_, 0, m)
            L.append(('s', f's_add_u32 s19, s{soff_reg}, {m*144*1024 + fragoff*1024}'))
            L.append(('a', f'v_cvt_pk_bf16_f32 v{o}, v{ga_}, v{ga_+1}')); L.append(('a', f'v_cvt_pk_bf16_f32 v{o+1}, v{ga_+2}, v{ga_+3}'))
            L.append(('a', f'v_cvt_pk_bf16_f32 v{o+2}, v{gb_}, v{gb_+1}')); L.append(('a', f'v_cvt_pk_bf16_f32 v{o+3}, v{gb_+2}, v{gb_+3}'))
            L.append(('v', f'buffer_store_dwordx4 {vr(o,4)}, v1, s[32:35], s19 offen {store_flags}', None))
        return L
    def epi_single(s):
        L = []
        for m in range(4):
            g, u = acc(s, 0, m), acc(s, 1, m)
            for r in range(4): L.append(('a', f'v_max_f32 v{g+r}, 0, v{g+r}'))
            for r in range(4): L.append(('a', f'v_mul_f32 v{g+r}, v{g+r}, v{u+r}'))
            L.append(('s', f's_add_u32 s19, s43, {m*144*1024}'))
            L.append(('a', f'v_cvt_pk_bf16_f32 v{u}, v{g}, v{g+1}')); L.append(('a', f'v_cvt_pk_bf16_f32 v{u+1}, v{g+2}, v{g+3}'))
            L.append(('v', f'buffer_store_dwordx2 {vr(u,2)}, v1, s[32:35], s19 offen {store_flags}', None))
        return L
    groups = [[k] for k in range(18)]
    groups += [[18], [19], [20, 21]]
    rest = list(range(22, 36))
    while rest: groups.append(rest[:grp]); rest = rest[grp:]
    groups += [[36, 37, 38, 39], [40, 41, 42, 43, 44]]
    first_of = {g[0]: g for g in groups}
    published = set()
    last_read = {}
    for j, f in enumerate(frags): last_read[f['unit']] = j
    barrier_at = []
    loadq = []
    st = dict(h=pre_steps, dma=pre_steps, p4=False)
    fillq = []
    jcur = [0]
    def slot_free(ui):
        u = units[ui]
        for v in range(ui):
            w = units[v]
            if w['lds'] < u['lds'] + u['size'] and u['lds'] < w['lds'] + w['size']:
                if not any(b > last_read[v] for b in barrier_at): return False
        return True
    def refill():
        if loadq: return
        if st['h'] < 18:
            loadq.extend(dma_ops(st['dma']) + h_ops(st['h'])); st['dma'] += 1; st['h'] += 1
        elif st['dma'] < len(units) and slot_free(st['dma']):
            if units[st['dma']]['ph'] == 4 and not st['p4']:
                assert jcur[0] >= 141
                loadq.extend([('a', 'v_lshrrev_b32 v2, 1, v0'), ('a', 'v_mul_u32_u24 v2, 576, v2'), ('a', 'v_and_b32 v7, 1, v0'), ('a', 'v_add_lshl_u32 v2, v2, v7, 4')])
                st['p4'] = True
            loadq.extend(dma_ops(st['dma'])); st['dma'] += 1
    def force(tags):
        while not all(t in vm.idx for t in tags):
            refill(); emit_op(loadq.pop(0))
    def pre_count(j, m):
        n = 0
        if j >= NF: return 0
        if m == 0:
            if not (wpair and j % 2): n += 1
            if j + D < NF and frags[j+D]['unit'] not in published: n += 2
            if j < 144 and j % 8 == 0: n += 1
        return n
    def pre_emit(j, m):
        if m != 0: return
        if j < 144 and j % 8 == 0:
            tg = [('h', frags[j]['kk'], 3)]
            force(tg)
            w = vm.wait_for(tg)
            if w: a(w)
        if not (wpair and j % 2):
            need_upto = j + (1 if wpair else 0)
            issued_upto = min(j + D, NF) - 1
            a(f's_waitcnt lgkmcnt({2*max(0, issued_upto - need_upto)})')
        if j + D < NF and frags[j+D]['unit'] not in published:
            g = first_of[frags[j+D]['unit']]
            tags = [('dma', x) for x in g]
            force(tags)
            w = vm.wait_for(tags)
            if w: a(w)
            a('s_barrier'); barrier_at.append(j if not wpair else j - 1)
            published.update(g)
    a(';MID')
    w = vm.wait_for([('dma', 0)]); a(w); a('s_barrier'); published.add(0); barrier_at.append(-1)
    a(';MID')
    for j in range(D):
        for s in read_ops(j): a(s[1])
    a('.p2align 3')
    nm = 0; next_load_at = 0; over = 0
    rd = []
    for j in range(NF):
        f = frags[j]; jcur[0] = j
        if j in (72, 144, 216, 288): a(';MID')
        if j == 144 + 2: fillq += epi_pair(0, 1, 42, 0) + epi_pair(2, 3, 42, 1)
        if j == 144 + 72: assert not fillq, len(fillq)
        if j == 144 + 72 + 2: fillq += epi_pair(4, 5, 42, 2)
        if j == 144 + 144 + 2:
            assert not fillq
            fillq += epi_pair(0, 1, 42, 3)
        b = WF + 4*(j % NB)
        if j == 0: pre_emit(0, 0)
        for m in range(4):
            if m == 0 and j + D < NF: rd = read_ops(j + D)
            c = acc(f['slot'], f['mat'], m)
            cin = '0' if f['kk'] == 0 else vr(c, 4)
            a(f'v_mfma_f32_16x16x32_bf16 {vr(c,4)}, {vr(b,4)}, {hreg(m, f["kk"])}, {cin}')
            nm += 1
            t = 4
            refill()
            if m == 3:
                over += len(rd)
                for s in rd: a(s[1])
                rd = []
                n0 = len(a.lines)
                if j + 1 < NF: pre_emit(j+1, 0)
                t += 4*(len(a.lines) - n0)
            if t == 4 and not rd:
                if loadq and loadq[0][0] == 'v' and nm >= next_load_at:
                    emit_op(loadq.pop(0))
                    p1 = st['h'] < 18 or any('s[28:31]' in o[1] for o in loadq)
                    next_load_at = max(next_load_at, nm - 3) + (spacing if p1 else look2*spacing)
                    continue
                if fillq and fillq[0][0] == 'v':
                    emit_op(fillq.pop(0)); continue
            if rd and rd[0][0] == 'd':
                emit_op(rd.pop(0)); t += 8
            nval = 0
            while t < 16:
                cand = None
                for kinds in (('s',), ('a',)):
                    for q in (rd, loadq, fillq):
                        if q and q[0][0] in kinds and not (q[0][0] == 'a' and nval >= maxv):
                            cand = q; break
                    if cand is not None: break
                if cand is None: break
                op = cand.pop(0); emit_op(op)
                if op[0] == 'a':
                    t = max(t, 8) + 4; nval += 1
                else: t += 4
    assert not fillq and not loadq and st['dma'] == len(units), (len(fillq), len(loadq), st)
    a(';MID')
    for op in epi_single(2): emit_op(op)
    a(';MID')
    a('K4_END:\ns_endpgm')
    a.end_kernel(name, 512, sgpr=56, accum=256)

def gen_k5(a, P=3, xmap=0, aflags='', wflags=''):
    name = 'k5_kernel'
    RING = max(P*4096, 15360)
    WB = RING + 3072
    a.launch(name, 240, 256, lds=max(4*WB, 86016))
    a.kernel(name)
    a('s_load_dwordx2 s[4:5], s[0:1], 96')
    a('s_load_dwordx2 s[6:7], s[0:1], 120')
    a('s_load_dwordx2 s[8:9], s[0:1], 136')
    a('s_cmp_ge_u32 s2, 240\ns_cbranch_scc1 K5_END')
    a('s_and_b32 s10, s2, 7\ns_mul_i32 s10, s10, 30\ns_lshr_b32 s11, s2, 3\ns_add_u32 s10, s10, s11')
    a('s_cmp_ge_u32 s10, 234\ns_cbranch_scc1 K5_END')
    a('v_lshrrev_b32 v1, 6, v0')
    a('v_readfirstlane_b32 s3, v1')
    if xmap == 0:
        a(f's_mul_i32 s11, s10, {(65536+8)//9}\ns_lshr_b32 s11, s11, 16')
        a('s_mul_i32 s12, s11, 9\ns_sub_u32 s12, s10, s12')
    else:
        a('s_cmp_lt_u32 s10, 130\ns_cselect_b32 s16, 5, 4\ns_cselect_b32 s17, 0, 130\ns_cselect_b32 s18, 13108, 16384\ns_cselect_b32 s19, 0, 5')
        a('s_sub_u32 s10, s10, s17\ns_mul_i32 s11, s10, s18\ns_lshr_b32 s11, s11, 16\ns_mul_i32 s12, s11, s16\ns_sub_u32 s12, s10, s12\ns_add_u32 s12, s12, s19')
    a('s_mul_i32 s13, s11, 5')
    a(f's_mul_i32 s40, s13, {144*1024}\ns_mul_i32 s16, s3, {36*1024}\ns_add_u32 s40, s40, s16')
    a(f's_mul_i32 s41, s3, {36*32*1152}\ns_lshl_b32 s16, s12, 7\ns_add_u32 s41, s41, s16')
    a(f's_mul_i32 s42, s3, {WB}')
    a('v_and_b32 v0, 63, v0\nv_lshlrev_b32 v1, 4, v0')
    AV = [1, 12, 13, 14, 15]
    for m in range(1, 5): a(f'v_add_u32 v{AV[m]}, {m*144*1024}, v1')
    a('v_lshrrev_b32 v2, 3, v0\nv_and_b32 v3, 6, v2\nv_and_b32 v4, 7, v0\nv_xor_b32 v3, v3, v4\nv_lshlrev_b32 v3, 4, v3')
    a('v_mul_u32_u24 v2, 1152, v2\nv_add_u32 v2, v2, v3')
    DV = [2, 9, 10, 11]
    for q in range(1, 4): a(f'v_add_u32 v{DV[q]}, {q*(8*1152-1024)}, v2')
    a(f's_mov_b32 s22, {4608*1152}\ns_mov_b32 s23, 0x00020000\ns_mov_b32 s26, {2048*4608*2}\ns_mov_b32 s27, 0x00020000')
    a('s_waitcnt lgkmcnt(0)')
    a(f's_mov_b32 s20, s4\ns_mov_b32 s21, s5\ns_add_u32 s24, s8, {ACT_OFF}\ns_addc_u32 s25, s9, 0')
    AB = 16; WF = AB + max(20*P, 80); ACC = WF + 16; GB = ACC + 80
    def loads_dma(s):
        L = []
        for q in range(4):
            t = f's_add_u32 m0, s42, {s*4096}\n' if q == 0 else ''
            t += f'buffer_load_dwordx4 v{DV[q]}, s[20:23], s41 offen offset:{q*1024} lds {wflags}'
            if q == 3: t += f'\ns_add_u32 s41, s41, {32*1152}'
            L.append(t)
        return L
    def load_act(s, m):
        t = f'buffer_load_dwordx4 {vr(AB+20*s+4*m,4)}, v{AV[m]}, s[24:27], s40 offen {aflags}'
        if m == 4: t += '\ns_add_u32 s40, s40, 1024'
        return t
    for x in loads_dma(0): a(x)
    for m in range(5): a(load_act(0, m))
    a('s_lshl_b32 s14, s12, 6\ns_lshl_b32 s16, s3, 4\ns_add_u32 s14, s14, s16')
    a('s_mul_i32 s43, s13, 18432\ns_lshl_b32 s16, s14, 5\ns_add_u32 s43, s43, s16')
    a('v_lshrrev_b32 v3, 5, v0\nv_mul_u32_u24 v3, 18432, v3\nv_and_b32 v4, 31, v0\nv_lshl_add_u32 v3, v4, 4, v3')
    a.srd(28, 8, 2048*576*2, off=X1T_OFF)
    a('v_lshrrev_b32 v8, 2, v0\nv_lshlrev_b32 v8, 7, v8\nv_and_b32 v4, 3, v0\nv_lshl_add_u32 v8, v4, 3, v8\nv_add_u32 v8, s42, v8\nv_bfe_u32 v7, v0, 3, 2')
    for t in range(4):
        a(f's_add_u32 s16, s3, {t}\ns_and_b32 s16, s16, 3\nv_xor_b32 v{4+t}, s16, v7\nv_lshl_add_u32 v{4+t}, v{4+t}, 5, v8')
    for i in range(0, 80, 2): a(f'v_mov_b64 {vr(ACC+i,2)}, 0')
    for s in range(1, P):
        for x in loads_dma(s): a(x)
        for m in range(5): a(load_act(s, m))
    a(f's_mov_b32 s44, {36//P}')
    a(';MID')
    a('.p2align 3')
    a('K5_LOOP:')
    a('s_cmp_eq_u32 s44, 1\ns_cselect_b32 s22, 0, s22\ns_cselect_b32 s26, 0, s26')
    for s in range(P):
        a(f's_waitcnt vmcnt({9*P-4})')
        for t in range(4):
            a(f'ds_read_b64_tr_b16 {vr(WF+4*t,2)}, v{4+t} offset:{s*4096}\nds_read_b64_tr_b16 {vr(WF+4*t+2,2)}, v{4+t} offset:{s*4096+2048}')
        dm = loads_dma(s)
        a(f's_waitcnt vmcnt({9*P-6})')
        for t in range(4):
            a(f's_waitcnt lgkmcnt({6-2*t})')
            c = ACC + 4*t
            a(f'v_mfma_f32_16x16x32_bf16 {vr(c,4)}, {vr(WF+4*t,4)}, {vr(AB+20*s,4)}, {vr(c,4)}')
        pend = dm + [load_act(s, 0)]
        issued = 0
        for m in range(1, 5):
            if m > 1: a(f's_waitcnt vmcnt({9*P - 5 - m + issued})')
            for t in range(4):
                c = ACC + 16*m + 4*t
                a(f'v_mfma_f32_16x16x32_bf16 {vr(c,4)}, {vr(WF+4*t,4)}, {vr(AB+20*s+4*m,4)}, {vr(c,4)}')
                if pend and t < 3:
                    a(pend.pop(0)); issued += 1
            pend.append(load_act(s, m))
        for x in pend: a(x)
    a('s_cmp_lg_u32 s44, 2\ns_cbranch_scc1 K5_NOX')
    a('K5_NOX:')
    a('s_sub_u32 s44, s44, 1\ns_cmp_lg_u32 s44, 0\ns_cbranch_scc1 K5_LOOP')
    a(';MID')
    a(f's_add_u32 m0, s42, {RING}')
    a('buffer_load_dwordx4 v3, s[28:31], s43 offen lds')
    a(f's_add_u32 m0, s42, {RING+1024}\ns_add_u32 s43, s43, {2*18432}')
    a('buffer_load_dwordx4 v3, s[28:31], s43 offen lds')
    a(f's_add_u32 m0, s42, {RING+2048}\ns_add_u32 s43, s43, {2*18432}')
    a('buffer_load_dwordx4 v3, s[28:31], s43 offen lds')
    a('v_bfe_u32 v9, v0, 4, 2\nv_lshlrev_b32 v10, 4, v9\ns_lshl_b32 s16, s14, 2\nv_add_u32 v10, s16, v10')
    a(f's_add_u32 s8, s8, {MOD_OFF+5*576*4}\ns_addc_u32 s9, s9, 0')
    a(f'global_load_dwordx4 {vr(GB,4)}, v10, s[8:9]')
    a('s_waitcnt vmcnt(4)')
    a('v_add_u32 v8, s42, v1')
    for t in range(1, 4):
        for m in range(5):
            a(f'ds_write_b128 v8, {vr(ACC+16*m+4*t,4)} offset:{((t-1)*5+m)*1024}')
    a('v_and_b32 v11, 15, v0\nv_mul_u32_u24 v11, 1152, v11\nv_lshl_add_u32 v11, v9, 3, v11')
    a.srd(32, 6, 2048*576*2)
    a('s_mul_i32 s45, s13, 18432\ns_lshl_b32 s16, s14, 1\ns_add_u32 s45, s45, s16')
    for t in range(1, 4):
        a(f's_sub_u32 s16, s3, {t}\ns_and_b32 s16, s16, 3\ns_mul_i32 s16, s16, {WB}\nv_add_u32 v{4+t}, s16, v1')
    a('v_lshlrev_b32 v4, 3, v0\nv_add_u32 v4, s42, v4')
    a('s_mov_b32 s17, 0xffff0000')
    a('s_waitcnt lgkmcnt(0)')
    a(';MID')
    a('s_barrier')
    a(';MID')
    for m in range(5):
        for t in range(1, 4):
            a(f'ds_read_b128 {vr(AB+16*m+4*t,4)}, v{4+t} offset:{((t-1)*5+m)*1024}')
    a('s_waitcnt vmcnt(0)')
    for m in range(5):
        a(f'ds_read_b64_tr_b16 {vr(AB+16*m,2)}, v4 offset:{RING+m*512}')
    a('s_waitcnt lgkmcnt(5)')
    for m in range(5):
        c = ACC+16*m; b = AB+16*m
        for h in range(2):
            a(f'v_pk_add_f32 {vr(c+2*h,2)}, {vr(c+2*h,2)}, {vr(b+4+2*h,2)}\nv_pk_add_f32 {vr(b+8+2*h,2)}, {vr(b+8+2*h,2)}, {vr(b+12+2*h,2)}')
        for h in range(2):
            a(f'v_pk_add_f32 {vr(c+2*h,2)}, {vr(c+2*h,2)}, {vr(b+8+2*h,2)}')
    a('s_waitcnt lgkmcnt(0)')
    for m in range(5):
        c = ACC+16*m; b = AB+16*m
        a(f'v_lshlrev_b32 v{b+4}, 16, v{b}\nv_and_b32 v{b+5}, s17, v{b}\nv_lshlrev_b32 v{b+6}, 16, v{b+1}\nv_and_b32 v{b+7}, s17, v{b+1}')
        for h in range(2):
            a(f'v_pk_fma_f32 {vr(c+2*h,2)}, {vr(c+2*h,2)}, {vr(GB+2*h,2)}, {vr(b+4+2*h,2)}')
        a(f'v_cvt_pk_bf16_f32 v{c}, v{c}, v{c+1}\nv_cvt_pk_bf16_f32 v{c+1}, v{c+2}, v{c+3}')
        a(f'buffer_store_dwordx2 {vr(c,2)}, v11, s[32:35], s45 offen')
        if m < 4: a('s_add_u32 s45, s45, 18432')
    a(';MID')
    a('K5_END:\ns_endpgm')
    a.end_kernel(name, GB+4, sgpr=56)


WDP_OFF = 0x2000000
EX_OFF = 0x2800000
EXS_OFF = 0x2F00000
FL_OFF = 0x3000000

class Stream:
    def __init__(self, a, vm, frags, units, groups, loads, D, maxv=2, wevery=1):
        self.a, self.vm, self.frags, self.units, self.D, self.maxv = a, vm, frags, units, D, maxv
        self.first_of = {g[0]: g for g in groups}
        self.published = set(); self.barrier_at = []
        self.last_read = {}
        for j, f in enumerate(frags): self.last_read[f['unit']] = j
        self.loads = list(loads)
        self.loadq = []; self.fillq = []; self.cur_spacing = 4
        self.events = {}; self.j = 0; self.wevery = wevery; self.waited_upto = -1
    def emit(self, op):
        if op[0] == 'v': self.vm.issue(op[2] if len(op) > 2 else None)
        if op[0] == 'w':
            w = self.vm.wait_for(op[1])
            if w: self.a(w)
            return
        self.a(op[1])
    def slot_free(self, ui):
        u = self.units[ui]
        for v in range(ui):
            w = self.units[v]
            if w['lds'] < u['lds'] + u['size'] and u['lds'] < w['lds'] + w['size']:
                if not any(b > self.last_read[v] for b in self.barrier_at): return False
        return True
    def refill(self, forced=False):
        if self.loadq or not self.loads: return
        it = self.loads[0]
        if it.get('unit') is not None and not self.slot_free(it['unit']):
            assert not forced, ('forced load into busy slot', it['unit'], self.j)
            return
        if self.j < it.get('minj', -1):
            assert not forced, ('forced load too early', self.j)
            return
        self.loads.pop(0)
        self.loadq.extend(it['ops']()); self.cur_spacing = it['spacing']
    def issue_items(self, n):
        for _ in range(n):
            self.refill(True)
            while self.loadq: self.emit(self.loadq.pop(0))
    def force(self, tags):
        while not all(t in self.vm.idx for t in tags):
            self.refill(True); self.emit(self.loadq.pop(0))
    def publish(self, jr, jnow):
        ui = self.frags[jr]['unit']
        if ui in self.published: return
        g = self.first_of[ui]
        tags = [('dma', x) for x in g]
        self.force(tags)
        w = self.vm.wait_for(tags)
        if w: self.a(w)
        self.a('s_barrier'); self.barrier_at.append(jnow)
        self.published.update(g)
    def pre(self, j):
        NF = len(self.frags); D = self.D
        need = self.frags[j].get('need')
        if need:
            self.force(need)
            w = self.vm.wait_for(need)
            if w: self.a(w)
        if j > self.waited_upto:
            upto = min(j + self.frags[j].get('wev', self.wevery) - 1, NF - 1)
            cnt = sum(self.frags[x]['nrd'] for x in range(upto + 1, min(j + D, NF)))
            self.a(f's_waitcnt lgkmcnt({cnt})')
            self.waited_upto = upto
        if j + D < NF: self.publish(j + D, j)
    def start(self):
        for j in range(self.D):
            self.publish(j, -1)
            for op in self.frags[j]['read'](): self.emit(op)
    def run(self):
        a = self.a; NF = len(self.frags); D = self.D
        nm = 0; next_load = 0
        self.pre(0)
        for j in range(NF):
            self.j = j
            if j in self.events: self.events[j]()
            rd = self.frags[j + D]['read']() if j + D < NF else []
            mf = self.frags[j]['mfma']
            for m, ins in enumerate(mf):
                a(ins); nm += 1
                t = 4
                self.refill()
                last = m == len(mf) - 1
                if last:
                    for op in rd:
                        self.emit(op); t += 8 if op[0] == 'd' else 4
                    rd = []
                    n0 = len(a.lines)
                    if j + 1 < NF: self.pre(j + 1)
                    t += 4*(len(a.lines) - n0)
                if t == 4 and not rd:
                    if self.fillq and self.fillq[0][0] == 'v':
                        self.emit(self.fillq.pop(0)); continue
                    if self.loadq and self.loadq[0][0] == 'v' and nm >= next_load:
                        self.emit(self.loadq.pop(0))
                        next_load = max(next_load, nm - 3) + self.cur_spacing
                        continue
                elif self.loadq and self.loadq[0][0] == 'v' and nm >= next_load + 2 and not rd:
                    self.emit(self.loadq.pop(0))
                    next_load = max(next_load, nm - 3) + self.cur_spacing
                    continue
                if rd and rd[0][0] == 'd':
                    self.emit(rd.pop(0)); t += 8
                nval = 0
                while t < 16:
                    cand = None
                    for kinds in (('s', 'w'), ('a',)):
                        for q in (rd, self.loadq, self.fillq):
                            if q and q[0][0] in kinds and not (q[0][0] == 'a' and nval >= self.maxv):
                                cand = q; break
                        if cand is not None: break
                    if cand is None: break
                    op = cand.pop(0); self.emit(op)
                    if op[0] == 'a':
                        t = max(t, 8) + 4; nval += 1
                    else: t += 4
        assert not self.loadq and not self.loads, (len(self.loadq), len(self.loads))

def gen_pack(a, fused=False):
    a('s_load_dwordx2 s[4:5], s[0:1], 96\ns_load_dwordx2 s[6:7], s[0:1], 136')
    a('v_lshrrev_b32 v1, 6, v0\nv_readfirstlane_b32 s3, v1\nv_and_b32 v0, 63, v0')
    a('s_sub_u32 s10, s2, 128')
    a('s_cmp_lt_u32 s3, 5\ns_cbranch_scc1 PK_GO')
    a('s_cmp_lg_u32 s3, 5\ns_cbranch_scc1 PK_END\ns_cmp_ge_u32 s10, 96\ns_cbranch_scc1 PK_END')
    a(f'v_lshlrev_b32 v1, 7, v0\ns_lshl_b32 s11, s10, 13\ns_add_u32 s11, s11, {FL_OFF}\nv_add_u32 v1, s11, v1\nv_mov_b32 v2, 0\ns_waitcnt lgkmcnt(0)\nglobal_store_dword v1, v2, s[6:7]\ns_endpgm')
    a('PK_GO:')
    a('s_mul_i32 s11, s10, 5\ns_add_u32 s11, s11, s3')
    a('s_cmp_ge_u32 s11, 576\ns_cbranch_scc1 PK_END')
    a('s_lshr_b32 s12, s11, 2\ns_and_b32 s13, s11, 3')
    a(f's_mul_i32 s14, s12, {65536//36+1}\ns_lshr_b32 s14, s14, 16\ns_mul_i32 s15, s14, 36\ns_sub_u32 s15, s12, s15')
    if fused:
        a('s_cmp_ge_u32 s15, 18\ns_cselect_b32 s16, 1, 0\ns_mul_i32 s17, s16, 18\ns_sub_u32 s17, s15, s17')
        a('s_lshr_b32 s18, s17, 2\ns_and_b32 s19, s17, 3')
        a('s_lshl_b32 s15, s16, 3\ns_lshl_b32 s20, s18, 1\ns_add_u32 s15, s15, s20\ns_add_u32 s15, s15, s19')
        a('s_lshl_b32 s20, s16, 2\ns_add_u32 s20, s20, s18\ns_lshl_b32 s21, s19, 3\ns_add_u32 s20, s20, s21\ns_cmp_ge_u32 s19, 2\ns_cselect_b32 s15, s20, s15')
        a('s_lshl_b32 s20, s16, 1\ns_add_u32 s20, s20, s17\ns_add_u32 s20, s20, 16\ns_cmp_ge_u32 s17, 16\ns_cselect_b32 s15, s20, s15')
    a(f's_mul_i32 s16, s12, {32*1152}\ns_mul_i32 s17, s13, 288\ns_add_u32 s16, s16, s17')
    a('s_mul_i32 s18, s3, 9216\ns_mov_b32 m0, s18')
    a(f'v_mul_u32_u24 v1, {65536//18+1}, v0\nv_lshrrev_b32 v1, 16, v1\nv_mul_u32_u24 v2, 18, v1\nv_sub_u32 v2, v0, v2\nv_mul_u32_u24 v1, 1152, v1\nv_lshl_add_u32 v1, v2, 4, v1')
    a('s_waitcnt lgkmcnt(0)')
    a.srd(20, 4, 4608*1152)
    for n in range(9):
        a('buffer_load_dwordx4 v1, s[20:23], s16 offen lds')
        if n < 8:
            a(f's_add_u32 m0, m0, 1024\nv_add_u32 v2, 10, v2\nv_cmp_le_u32 vcc, 18, v2\nv_mov_b32 v3, {3*1152+160}\nv_mov_b32 v4, {4*1152+160-288}\nv_cndmask_b32 v3, v3, v4, vcc\nv_add_u32 v1, v1, v3\nv_subrev_u32 v4, 18, v2\nv_cndmask_b32 v2, v2, v4, vcc')
    a('v_lshrrev_b32 v5, 2, v0\nv_mul_u32_u24 v5, 288, v5\nv_add_u32 v5, s18, v5\nv_and_b32 v6, 3, v0\nv_lshl_add_u32 v11, v6, 3, v5\nv_lshl_add_u32 v5, v6, 4, v5')
    for rel in range(4):
        a(f's_add_u32 s19, s14, {rel}\ns_and_b32 s19, s19, 3\ns_lshl_b32 s19, s19, 6\nv_add_u32 v{7+rel}, s19, v5')
    a.srd(24, 6, 16*324*1024, off=WDP_OFF)
    a(f's_lshl_b32 s19, s14, 2\ns_add_u32 s19, s19, s13\ns_mul_i32 s19, s19, {324*1024}')
    a('s_mul_i32 s28, s15, 5120\ns_add_u32 s28, s28, s19')
    a(f's_lshl_b32 s29, s15, 11\ns_add_u32 s29, s29, s19\ns_add_u32 s30, s29, {252*1024}\ns_add_u32 s29, s29, {180*1024}\ns_add_u32 s31, s28, 4096')
    a('v_lshlrev_b32 v1, 4, v0')
    a('s_waitcnt vmcnt(0)')
    dst = {(1, 0): ('s28', 0), (1, 1): ('s28', 1024), (2, 0): ('s28', 2048), (2, 1): ('s28', 3072), (3, 0): ('s29', 0), (3, 1): ('s29', 1024), (0, 0): ('s30', 0), (0, 1): ('s30', 1024)}
    L = list(dst.items())
    for n, ((rel, t), _) in enumerate(L):
        a(f'ds_read_b64_tr_b16 {vr(16+4*n,2)}, v{7+rel} offset:{8*t}\nds_read_b64_tr_b16 {vr(18+4*n,2)}, v{7+rel} offset:{8*t+16*288}')
        if n == 5: a('s_waitcnt lgkmcnt(8)')
    a(f'ds_read_b64_tr_b16 v[48:49], v11 offset:256\nds_read_b64_tr_b16 v[50:51], v11 offset:{256+16*288}')
    for n, (_, (so, off)) in enumerate(L):
        if n >= 2: a(f's_waitcnt lgkmcnt({2*(8-n)})')
        a(f'buffer_store_dwordx4 {vr(16+4*n,4)}, v1, s[24:27], {so} offen offset:{off} sc1')
    a('s_waitcnt lgkmcnt(0)')
    a('buffer_store_dwordx4 v[48:51], v1, s[24:27], s31 offen sc1')
    a('PK_END:\ns_endpgm')

def gen_k5s(a, D=6, pre=3, sp1=2.5, sp2=6, g1=2, ackd=40):
    name = 'k5_kernel'
    RINGF = 144
    XST = RINGF*1024
    a.launch(name, 256, 256, lds=XST + 4*3072)
    a.kernel(name)
    a('s_load_dwordx2 s[8:9], s[0:1], 136')
    a('s_load_dwordx2 s[6:7], s[0:1], 120')
    a('s_cmp_ge_u32 s2, 256\ns_cbranch_scc1 K5_END')
    a('v_lshrrev_b32 v1, 6, v0')
    a('v_readfirstlane_b32 s3, v1')
    a('s_bfe_u32 s10, s2, 0x20001')
    a('s_and_b32 s11, s2, 1\ns_lshl_b32 s11, s11, 3\ns_bfe_u32 s12, s2, 0x30003\ns_add_u32 s11, s11, s12')
    a('s_lshr_b32 s12, s2, 6')
    a('s_lshl_b32 s13, s11, 3\ns_lshl_b32 s16, s3, 1\ns_add_u32 s13, s13, s16')
    a(f's_mul_i32 s40, s13, {144*1024}\ns_mul_i32 s16, s10, {36*1024}\ns_add_u32 s40, s40, s16')
    a(f's_lshl_b32 s41, s10, 2\ns_add_u32 s41, s41, s12\ns_mul_i32 s41, s41, {324*1024}\ns_lshl_b32 s46, s3, 10\ns_add_u32 s41, s41, s46')
    a(f'v_and_b32 v0, 63, v0\nv_lshlrev_b32 v1, 4, v0\nv_add_u32 v2, {144*1024}, v1')
    a(f's_mov_b32 s22, {16*324*1024}\ns_mov_b32 s23, 0x00020000\ns_mov_b32 s26, {2048*4608*2}\ns_mov_b32 s27, 0x00020000')
    a('s_mov_b32 m0, s46')
    a('s_waitcnt lgkmcnt(0)')
    a(f's_add_u32 s20, s8, {WDP_OFF}\ns_addc_u32 s21, s9, 0\ns_add_u32 s24, s8, {ACT_OFF}\ns_addc_u32 s25, s9, 0')
    H = 16; NB = D + 1; WF = 48; ACC = WF + 4*NB; RX = ACC + 72; GB = RX + 40; TMP = GB + 12
    vm = VmTrack()
    def hreg(m, s):
        idx = 2*s + m
        return f'a[{4*idx}:{4*idx+3}]' if idx < 64 else vr(H + 4*(idx-64), 4)
    NU = 81
    units = [dict(lds=(4*u % RINGF)*1024, size=4096) for u in range(NU)]
    def dma_item(u, sp):
        def ops():
            L = []
            if u:
                L.append(('s', 's_add_u32 s41, s41, 4096')); L.append(('s', f's_add_u32 m0, s46, {units[u]["lds"]}'))
            L.append(('v', 'buffer_load_dwordx4 v1, s[20:23], s41 offen lds', ('dma', u)))
            return L
        return dict(ops=ops, unit=u, spacing=sp)
    def act_item(s, sp):
        def ops():
            L = []
            if s and s % 4 == 0: L.append(('s', 's_add_u32 s40, s40, 4096'))
            for m in range(2):
                L.append(('v', f'buffer_load_dwordx4 {hreg(m,s)}, v{1+m}, s[24:27], s40 offen offset:{(s%4)*1024}', ('h', s, m)))
            return L
        return dict(ops=ops, spacing=sp)
    loads = []; nu = 0
    for s in range(36):
        while 4*nu < 5*(s+1) + D: loads.append(dma_item(nu, sp1)); nu += 1
        loads.append(act_item(s, sp1))
    n_first = next(k for k, it in enumerate(loads) if sum(1 for x in loads[:k] if 'unit' not in x) >= pre)
    def x1_ops():
        L = [('s', f's_add_u32 m0, s47, {XST}'), ('v', 'buffer_load_dwordx4 v1, s[28:31], s43 offen lds', None),
             ('s', f's_add_u32 m0, s47, {XST+1024}'), ('s', 's_add_u32 s43, s43, 18432'), ('v', 'buffer_load_dwordx4 v1, s[28:31], s43 offen lds', None),
             ('s', f's_add_u32 m0, s47, {XST+2048}'), ('v', 'buffer_load_dwordx4 v5, s[28:31], s44 offen lds', None),
             ('v', f'global_load_dwordx4 {vr(GB,4)}, v6, s[4:5]', None), ('v', f'global_load_dwordx4 {vr(GB+4,4)}, v6, s[4:5] offset:16', None),
             ('v', f'global_load_dwordx4 {vr(GB+8,4)}, v7, s[4:5]', ('x1',))]
        return L
    while nu < NU:
        loads.append(dma_item(nu, sp2)); nu += 1
    loads.append(dict(ops=x1_ops, spacing=sp2))
    RA = [3, 4, 8]
    frags = []
    def add_frag(tile, s):
        j = len(frags); off = (j % RINGF)*1024
        b = WF + 4*(j % NB)
        def rd(off=off, b=b):
            return [('d', f'ds_read_b128 {vr(b,4)}, v{RA[off >> 16]} offset:{off & 0xffff}')]
        mf = []
        for m in range(2):
            c = ACC + 8*tile + 4*m
            mf.append(f'v_mfma_f32_16x16x32_bf16 {vr(c,4)}, {vr(b,4)}, {hreg(m,s)}, {"0" if s == 0 else vr(c,4)}')
        frags.append(dict(unit=j // 4, read=rd, nrd=1, mfma=mf))
    for s in range(36):
        for t in range(5):
            add_frag(t, s)
            if t == 0: frags[-1]['need'] = [('h', s, 1)]
    for t0 in (5, 7):
        for s in range(36):
            for t in range(2): add_frag(t0 + t, s)
    groups = [[0], [1]]; u = 2
    while u < NU:
        n = g1 if u < 48 else 4
        groups.append(list(range(u, min(u+n, NU)))); u += n
    S = Stream(a, vm, frags, units, groups, loads, D, wevery=2)
    S.issue_items(n_first)
    a('v_mov_b32 v3, v1\nv_add_u32 v4, 0x10000, v1\nv_add_u32 v8, 0x20000, v1')
    a('s_mul_i32 s47, s3, 3072')
    a('s_mul_i32 s14, s12, 144\ns_lshl_b32 s16, s10, 5\ns_add_u32 s15, s14, s16\ns_add_u32 s14, s14, 128')
    a('s_mul_i32 s42, s13, 18432\ns_lshl_b32 s16, s15, 5\ns_add_u32 s43, s42, s16\ns_lshl_b32 s16, s14, 5\ns_add_u32 s44, s42, s16')
    a('v_lshrrev_b32 v5, 5, v0\nv_mul_u32_u24 v5, 18432, v5\nv_and_b32 v6, 31, v0\nv_lshl_add_u32 v5, v6, 4, v5')
    a('v_lshrrev_b32 v9, 4, v0\ns_lshl_b32 s16, s15, 2\nv_lshl_add_u32 v6, v9, 5, s16\ns_lshl_b32 s16, s14, 2\nv_lshl_add_u32 v7, v9, 4, s16')
    a(f's_add_u32 s4, s8, {MOD_OFF+5*576*4}\ns_addc_u32 s5, s9, 0')
    a.srd(28, 8, 2048*576*2, off=X1T_OFF)
    a.srd(32, 8, FL_OFF + 0x40000 - EX_OFF, off=EX_OFF)
    a.srd(36, 6, 2048*576*2)
    a('s_lshl_b32 s48, s11, 2\ns_add_u32 s48, s48, s12\ns_lshl_b32 s48, s48, 2')
    a('s_mul_i32 s49, s3, 6144')
    for rel in (1, 2, 3):
        a(f's_add_u32 s16, s10, {rel}\ns_and_b32 s16, s16, 3\ns_add_u32 s16, s16, s48\ns_mul_i32 s16, s16, 24576\ns_add_u32 s16, s16, s49\ns_add_u32 s{49+rel}, s16, {(rel-1)*2048}')
    a(f's_add_u32 s16, s48, s3\ns_lshl_b32 s16, s16, 12\ns_lshl_b32 s17, s10, 10\ns_add_u32 s16, s16, s17\ns_add_u32 s53, s16, {EXS_OFF-EX_OFF}')
    a('s_add_u32 s17, s48, s10')
    a('s_mul_i32 s54, s17, 24576\ns_add_u32 s54, s54, s49')
    a(f's_lshl_b32 s55, s17, 12\ns_add_u32 s55, s55, {EXS_OFF-EX_OFF}')
    a(f's_lshl_b32 s16, s17, 9\ns_lshl_b32 s18, s3, 7\ns_add_u32 s16, s16, s18\ns_add_u32 s56, s16, {FL_OFF-EX_OFF}\ns_add_u32 s57, s56, 0x20000')
    a('v_min_u32 v10, 2, v0\nv_sub_u32 v10, s10, v10\nv_add_u32 v10, 3, v10\nv_and_b32 v10, 3, v10\nv_add_u32 v10, s48, v10\nv_lshlrev_b32 v10, 9, v10\nv_add_u32 v10, s18, v10')
    a(f'v_cmp_lt_u32 vcc, 2, v0\nv_mov_b32 v11, {FL_OFF-EX_OFF}\nv_mov_b32 v12, {FL_OFF-EX_OFF+0x20000}\nv_cndmask_b32 v11, v11, v12, vcc\nv_add_u32 v10, v10, v11')
    a('v_mov_b32 v11, 0\nv_mov_b32 v12, 1')
    a(';MID')
    S.start()
    a(';MID')
    def send_group(t0, so, tag):
        L = []
        for m in range(2):
            x, y = ACC + 8*t0 + 4*m, ACC + 8*(t0+1) + 4*m
            L += [('a', f'v_cvt_pk_bf16_f32 v{x}, v{x}, v{x+1}'), ('a', f'v_cvt_pk_bf16_f32 v{x+1}, v{x+2}, v{x+3}'),
                  ('a', f'v_cvt_pk_bf16_f32 v{x+2}, v{y}, v{y+1}'), ('a', f'v_cvt_pk_bf16_f32 v{x+3}, v{y+2}, v{y+3}'),
                  ('v', f'buffer_store_dwordx4 {vr(x,4)}, v1, s[32:35], {so} offen offset:{1024*m} sc1', tag if m else None)]
        return L
    def send_s():
        x = ACC + 32
        return [('a', f'v_cvt_pk_bf16_f32 v{TMP+k}, v{x+2*k}, v{x+2*k+1}') for k in range(4)] + [('v', f'buffer_store_dwordx4 {vr(TMP,4)}, v1, s[32:35], s53 offen sc1', 'send1')]
    def ev(j, fn): S.events[j] = fn
    ev(90, lambda: a(';MID'))
    ev(180, lambda: a(';MID'))
    ev(183, lambda: S.fillq.extend(send_group(0, 's50', None) + send_group(2, 's51', None) + send_s()))
    ev(183 + ackd + 16, lambda: S.fillq.extend([('w', ['send1']), ('v', 'buffer_store_dword v12, v11, s[32:35], s56 offen sc1', None)]))
    ev(252, lambda: a(';MID'))
    ev(255, lambda: S.fillq.extend(send_group(5, 's52', 'send2')))
    ev(255 + ackd, lambda: S.fillq.extend([('w', ['send2']), ('v', 'buffer_store_dword v12, v11, s[32:35], s57 offen sc1', None)]))
    a('.p2align 3')
    S.run()
    assert not S.fillq
    a(';MID')
    a('s_mov_b32 s58, 0')
    a('K5_POLL:\nbuffer_load_dword v13, v10, s[32:35], 0 offen sc1\ns_add_u32 s58, s58, 1\ns_waitcnt vmcnt(0)\nv_cmp_eq_u32 vcc, 0, v13\ns_cmp_ge_u32 s58, 60000\ns_cbranch_scc1 K5_GOT\ns_nop 2\ns_cbranch_vccnz K5_POLL\nK5_GOT:')
    a(';MID')
    for rel in range(3):
        for m in range(2):
            if rel == 2 and m == 0: a('s_add_u32 s54, s54, 4096')
            a(f'buffer_load_dwordx4 {vr(RX+8*rel+4*m,4)}, v1, s[32:35], s54 offen offset:{(rel%2)*2048+m*1024} sc1')
    a('s_cmp_lg_u32 s3, s10\ns_cbranch_scc1 K5_NOS1')
    for rel in range(3):
        a(f's_add_u32 s16, s10, {rel+1}\ns_and_b32 s16, s16, 3\ns_lshl_b32 s16, s16, 10\ns_add_u32 s16, s16, s55')
        a(f'buffer_load_dwordx4 {vr(RX+24+4*rel,4)}, v1, s[32:35], s16 offen sc1')
    a('K5_NOS1:')
    XR = WF
    a(f'v_and_b32 v13, 15, v0\nv_lshlrev_b32 v14, 3, v13\nv_lshl_add_u32 v14, v9, 8, v14\ns_add_u32 s16, s47, {XST}\nv_add_u32 v14, s16, v14\nv_lshl_add_u32 v15, v0, 3, s16')
    for m in range(2):
        for t in range(2):
            a(f'ds_read_b64_tr_b16 {vr(XR+4*m+2*t,2)}, v14 offset:{m*1024+t*128}')
    for m in range(2):
        a(f'ds_read_b64_tr_b16 {vr(XR+8+2*m,2)}, v15 offset:{2048+m*512}')
    a('v_mul_u32_u24 v13, 1152, v13\nv_lshl_add_u32 v14, v9, 4, v13\nv_lshl_add_u32 v15, v9, 3, v13')
    a('s_lshl_b32 s16, s15, 1\ns_add_u32 s45, s42, s16\ns_lshl_b32 s16, s14, 1\ns_add_u32 s46, s42, s16')
    a('s_mov_b32 s17, 0xffff0000\nv_mov_b32 v11, 0x3f80\nv_mov_b32 v12, 0x3f800000')
    a('s_waitcnt lgkmcnt(0)')
    XU = H
    for k in range(12):
        a(f'v_lshlrev_b32 v{XU+2*k}, 16, v{XR+k}\nv_and_b32 v{XU+2*k+1}, s17, v{XR+k}')
    a('s_waitcnt vmcnt(0)')
    a(';MID')
    def accreg(m, e): return ACC + 8*(7 + e//4) + 4*m + e % 4
    for m in range(2):
        for rel in range(3):
            for k in range(4):
                r = RX + 8*rel + 4*m + k
                a(f'v_dot2c_f32_bf16 v{accreg(m,2*k)}, v{r}, v11\nv_dot2c_f32_bf16 v{accreg(m,2*k+1)}, v{r}, v12')
        a('s_nop 2')
        for k in range(4):
            c = accreg(m, 2*k)
            a(f'v_pk_fma_f32 {vr(XU+8*m+2*k,2)}, {vr(c,2)}, {vr(GB+2*k,2)}, {vr(XU+8*m+2*k,2)}')
        for k in range(4):
            a(f'v_cvt_pk_bf16_f32 v{TMP+4*m+k}, v{XU+8*m+2*k}, v{XU+8*m+2*k+1}')
        a(f'buffer_store_dwordx4 {vr(TMP+4*m,4)}, v14, s[36:39], s45 offen')
        if m == 0: a('s_add_u32 s45, s45, 18432')
    a('s_cmp_lg_u32 s3, s10\ns_cbranch_scc1 K5_END')
    x = ACC + 32
    for rel in range(3):
        for k in range(4):
            r = RX + 24 + 4*rel + k
            a(f'v_dot2c_f32_bf16 v{x+2*k}, v{r}, v11\nv_dot2c_f32_bf16 v{x+2*k+1}, v{r}, v12')
    a('s_nop 2')
    for k in range(4):
        a(f'v_pk_fma_f32 {vr(XU+16+2*k,2)}, {vr(x+2*k,2)}, {vr(GB+8+2*(k%2),2)}, {vr(XU+16+2*k,2)}')
    for k in range(4):
        a(f'v_cvt_pk_bf16_f32 v{x+k}, v{XU+16+2*k}, v{XU+16+2*k+1}')
    a(f'buffer_store_dwordx2 {vr(x,2)}, v15, s[36:39], s46 offen\ns_add_u32 s46, s46, 18432\nbuffer_store_dwordx2 {vr(x+2,2)}, v15, s[36:39], s46 offen')
    a('K5_END:\ns_endpgm')
    assert TMP + 8 <= 256
    a.end_kernel(name, 512, sgpr=64, accum=256)


def sigma_of(s):
    qq, r = divmod(s, 18)
    if r >= 16: return 32 + 2*qq + (r - 16)
    if r % 4 >= 2: return 8*(r % 4) + 4*qq + r//4
    return 8*qq + 2*(r//4) + r % 4
PERM = [0]*36
for _s in range(36): PERM[sigma_of(_s)] = _s
WS_SPAN = 0x4000000
FLS = 0x20000

def gen_k45(a, D=5, pre_steps=2, spacing=5, grp=3, sp_h=10, sp_q=16, sp_w=5.5, sp2=6, g1=3, ackd=44, ack4=24, npre=20, pj2=55, pj3=108, sp_a=5, sp1=3.2, nsa=14, mids=None):
    name = 'k4_kernel'
    RING = 144*1024
    XST = RING
    a.launch(name, 256, 256, lds=RING + 4*3072)
    a.kernel(name)
    a('s_load_dwordx4 s[4:7], s[0:1], 80')
    a('s_load_dwordx2 s[28:29], s[0:1], 136')
    a('s_load_dwordx2 s[32:33], s[0:1], 120')
    a('s_cmp_ge_u32 s2, 256\ns_cbranch_scc1 K4_END')
    a('v_lshrrev_b32 v1, 6, v0')
    a('v_readfirstlane_b32 s3, v1')
    a('s_bfe_u32 s10, s2, 0x30003\ns_and_b32 s11, s2, 7')
    a('s_lshr_b32 s12, s2, 6')
    a('s_mul_i32 s13, s11, 9\ns_lshl_b32 s14, s12, 1\ns_add_u32 s14, s14, s13')
    a('s_add_u32 s13, s13, 8')
    a('s_lshl_b32 s15, s10, 4\ns_lshl_b32 s16, s3, 2\ns_add_u32 s15, s15, s16')
    a(f's_mul_i32 s40, s15, 18432\ns_add_u32 s40, s40, {H2F_OFF}')
    a('s_lshl_b32 s44, s14, 7')
    a('s_lshl_b32 s46, s3, 11')
    H = 8; WF = 40; ACC = 64; NB = 6
    HV = [1, ACC+162, ACC+163, ACC+164]
    a('v_and_b32 v0, 63, v0\nv_lshlrev_b32 v1, 4, v0')
    for m in range(1, 4): a(f'v_add_u32 v{HV[m]}, {m*18432}, v1')
    a('v_lshrrev_b32 v2, 3, v0\nv_and_b32 v3, 6, v2\nv_and_b32 v4, 7, v0\nv_xor_b32 v3, v3, v4\nv_lshlrev_b32 v3, 4, v3')
    a('s_lshl_b32 s16, s3, 3\nv_add_u32 v2, s16, v2\nv_mul_u32_u24 v2, 9216, v2\nv_add_u32 v2, v2, v3')
    a(f's_mov_b32 s22, {576*9216}\ns_mov_b32 s23, 0x00020000\ns_mov_b32 s26, {576*9216+1024}\ns_mov_b32 s27, 0x00020000\ns_mov_b32 s30, {WS_SPAN}\ns_mov_b32 s31, 0x00020000')
    a('s_mov_b32 m0, s46')
    a('s_waitcnt lgkmcnt(0)')
    a('s_mov_b32 s20, s4\ns_mov_b32 s21, s5\ns_sub_u32 s24, s6, 1024\ns_subb_u32 s25, s7, 0')
    vm = VmTrack()
    def hq(idx): return f'a[{4*idx}:{4*idx+3}]' if idx < 64 else vr(H + 4*(idx-64), 4)
    units = []
    for k in range(18): units.append(dict(ph=1, k=k, size=8192))
    for ph in (2, 3):
        for u in range(9): units.append(dict(ph=ph, k=u, size=8192))
    for u in range(9): units.append(dict(ph=4, k=u, size=4096))
    U5 = len(units)
    for u in range(81): units.append(dict(ph=5, k=u, size=4096))
    pos = 0
    for u in units:
        if pos + u['size'] > RING: pos = 0
        u['lds'] = pos; pos += u['size']
    A2 = 160
    MV = 232
    V2, RA0, RA1, RA2, VX, VG, VGS, VP1, VP2, VPX, VZ, VONE, VPOLL, VGQ = range(MV, MV+14)
    RX = 64; GB = RX + 40; TMP = GB + 12
    def dma_item(ui, sp):
        u = units[ui]
        def ops():
            L = []
            if u['ph'] == 5:
                if u['k']: L.append(('s', 's_add_u32 s41, s41, 4096'))
                L.append(('s', f's_add_u32 m0, s47, {u["lds"]}'))
                L.append(('v', 'buffer_load_dwordx4 v1, s[28:31], s41 offen lds', ('dma', ui)))
                return L
            if u['ph'] == 4:
                if u['k'] == 0:
                    L += [('a', 'v_lshrrev_b32 v2, 1, v0'), ('a', 'v_mul_u32_u24 v2, 576, v2'), ('a', 'v_and_b32 v7, 1, v0'), ('a', 'v_add_lshl_u32 v2, v2, v7, 4')]
                else: L.append(('s', f's_add_u32 s45, s45, {64*9216}'))
                L.append(('s', f's_add_u32 m0, s47, {u["lds"]}'))
                L.append(('v', f'buffer_load_dwordx4 v2, s[36:39], s45 offen lds', ('dma', ui)))
                return L
            vo = 'v2' if u['ph'] == 1 else 'v5'
            if ui:
                if u['k'] == 0: d = (128 - 17*32*9216) if u['ph'] == 2 else (64 - 8*64*9216)
                else: d = (32 if u['ph'] == 1 else 64)*9216
                L.append(('s', f's_add_u32 s44, s44, {d & 0xffffffff}'))
                L.append(('s', f's_add_u32 m0, s46, {u["lds"]}'))
            L.append(('v', f'buffer_load_dwordx4 {vo}, s[20:23], s44 offen lds', None))
            L.append(('v', f'buffer_load_dwordx4 {vo}, s[24:27], s44 offen offset:1024 lds', ('dma', ui)))
            return L
        it = dict(ops=ops, unit=ui, spacing=sp)
        if u['ph'] == 4 and u['k'] == 0: it['minj'] = 144
        return it
    def h_item(kk):
        def ops():
            L = []
            if kk and kk % 4 == 0: L.append(('s', 's_add_u32 s40, s40, 4096'))
            for m in range(4):
                L.append(('v', f'buffer_load_dwordx4 {hq(4*kk+m)}, v{HV[m]}, s[28:31], s40 offen offset:{(kk%4)*1024}', ('h', kk, m)))
            return L
        return dict(ops=ops, spacing=spacing)
    J4 = 288; J5 = 324
    abase = [None]
    def act_item(sg, sp):
        def ops():
            L = []
            off = PERM[sg]*1024
            if abase[0] is None or not (0 <= off - abase[0] < 4096):
                L.append(('s', f's_add_u32 s49, s48, {off}')); abase[0] = off
            for m in range(2):
                L.append(('v', f'buffer_load_dwordx4 {hq(2*sg+m)}, v{(1, V2)[m]}, s[28:31], s49 offen offset:{off-abase[0]} sc1', ('act', sg, m)))
            return L
        return dict(ops=ops, spacing=sp, minj=J4 + 2*(sg//2) + 2)
    slow = []
    def poll_item(tag, vaddr, sp, minj):
        return dict(ops=lambda: [('v', f'buffer_load_dword v{VPOLL}, v{VP1}, s[28:31], {vaddr} offen sc1', tag)], spacing=sp, minj=minj)
    def check_ops(tag, vaddr):
        n = len(slow); slow.append(vaddr)
        return [('w', [tag]), ('a', f'v_cmp_eq_u32 vcc, 0, v{VPOLL}'), ('a', 'v_nop'), ('s', f's_cbranch_vccnz K4_SLOW{n}\nK4_RET{n}:')]
    def check_item(tag, vaddr, sp, minj):
        return dict(ops=lambda: check_ops(tag, vaddr), spacing=sp, minj=minj)
    def x1_ops():
        return [('s', f's_add_u32 m0, s50, {XST}'), ('v', 'buffer_load_dwordx4 v1, s[28:31], s51 offen lds', None),
             ('s', f's_add_u32 m0, s50, {XST+1024}'), ('s', 's_add_u32 s51, s51, 18432'), ('v', 'buffer_load_dwordx4 v1, s[28:31], s51 offen lds', None),
             ('s', f's_add_u32 m0, s50, {XST+2048}'), ('v', f'buffer_load_dwordx4 v{VX}, s[28:31], s52 offen lds', None),
             ('v', f'buffer_load_dwordx4 {vr(GB,4)}, v{VG}, s[28:31], 0 offen', None), ('v', f'buffer_load_dwordx4 {vr(GB+4,4)}, v{VG}, s[28:31], 0 offen offset:16', None),
             ('v', f'buffer_load_dwordx4 {vr(GB+8,4)}, v{VGS}, s[28:31], 0 offen', ('x1',))]
    loads = []
    for k in range(18): loads += [dma_item(k, spacing), h_item(k)]
    for ui in range(18, U5): loads.append(dma_item(ui, sp_h if ui < 36 else sp_q))
    nu = [0]
    def wdp(upto, sp):
        while nu[0] < min(upto, 81): loads.append(dma_item(U5 + nu[0], sp)); nu[0] += 1
    def pollcheck(n, jp, jc, between):
        so = f's{66+n}'
        loads.append(poll_item(f'poll{n}', so, sp_w, jp))
        between()
        loads.append(check_item(f'poll{n}', so, 1, jc))
    wdp(npre - 3, sp_w)
    pollcheck(0, J4 - 12, J4 - 2, lambda: wdp(npre, sp_w))
    def acts(lo, hi):
        for sg in range(lo, hi):
            sp = sp_a if sg < nsa else sp1
            wdp((5*(sg+1) + D + 11)//4, sp)
            loads.append(act_item(sg, sp))
    acts(0, 12)
    pollcheck(1, 0, 0, lambda: acts(12, 16))
    acts(16, 24)
    wdp(36, sp1)
    pollcheck(2, J5 + pj2, J5 + pj2 + 18, lambda: wdp(42, sp1))
    acts(24, 32)
    pollcheck(3, J5 + pj3, J5 + pj3 + 18, lambda: wdp(52, sp1))
    acts(32, 36)
    wdp(81, sp2)
    nu = 81
    while nu < 81: loads.append(dma_item(U5 + nu, sp2)); nu += 1
    loads.append(dict(ops=x1_ops, spacing=sp2))
    TR1 = [3, 4, 6, 7]
    areg = {('p1', t): TR1[t] for t in range(4)}
    ab = {k: 0 for k in areg}
    def addr_setup(key):
        if key == ('p2', 0):
            areg[('p2', 0)] = 3; areg[('p2', 1)] = 4; ab[('p2', 0)] = 0; ab[('p2', 1)] = 0
            return ['v_lshrrev_b32 v3, 2, v0', 'v_lshlrev_b32 v3, 6, v3', 'v_and_b32 v4, 3, v0', 'v_lshl_add_u32 v3, v4, 3, v3',
                    'v_bfe_u32 v4, v0, 4, 1', 'v_lshl_add_u32 v3, v4, 5, v3', 'v_xor_b32 v4, 32, v3']
        if key == ('p4', 0):
            areg[key] = 6; ab[key] = 0
            return ['v_lshlrev_b32 v6, 3, v0']
    def acc(slot, mat, m): return ACC + 32*slot + 16*mat + 4*m
    frags = []
    def add1(unit, key, off, hs, slot, mat, kk):
        j = len(frags); b = WF + 4*(j % NB)
        def rd():
            L = []
            if key not in areg: L += [('a', s) for s in addr_setup(key)]
            r = areg[key]; lo = off - ab[key]
            if lo < 0 or lo + hs > 65535:
                nb = off if off >= 49152 else 0
                L.append(('a', f'v_add_u32 v{r}, {(nb - ab[key]) & 0xffffffff}, v{r}'))
                ab[key] = nb; lo = off - nb
            return L + [('d', f'ds_read_b64_tr_b16 {vr(b,2)}, v{r} offset:{lo}'), ('d', f'ds_read_b64_tr_b16 {vr(b+2,2)}, v{r} offset:{lo+hs}')]
        mf = []
        for m in range(4):
            c = acc(slot, mat, m)
            mf.append(f'v_mfma_f32_16x16x32_bf16 {vr(c,4)}, {vr(b,4)}, {hq(4*kk+m)}, {"0" if kk == 0 else vr(c,4)}')
        frags.append(dict(unit=unit, read=rd, nrd=2, mfma=mf, wev=1))
    for k in range(18):
        for t in range(4):
            for mat in range(2):
                add1(k, ('p1', t), units[k]['lds'] + mat*1024, 4096, t, mat, k)
                if t == 0 and mat == 0: frags[-1]['need'] = [('h', k, 3)]
    for ph, slots in ((2, (4, 5)), (3, (0, 1))):
        for k in range(18):
            ui = 18 + (ph-2)*9 + k//2
            for t in range(2):
                for mat in range(2):
                    add1(ui, ('p2', t), units[ui]['lds'] + mat*1024 + (k & 1)*4096, 2048, slots[t], mat, k)
    for k in range(18):
        ui = 36 + k//2
        for mat in range(2):
            add1(ui, ('p4', 0), units[ui]['lds'] + (k & 1)*2048 + mat*1024, 512, 2, mat, k)
            frags[-1]['wev'] = 2
    assert len(frags) == J5
    def add2(tile, sg):
        j = len(frags); jj = j - J5; b = WF + 4*(j % NB)
        off = units[U5 + jj//4]['lds'] + (jj % 4)*1024
        rd = lambda: [('d', f'ds_read_b128 {vr(b,4)}, v{(RA0, RA1, RA2)[off >> 16]} offset:{off & 0xffff}')]
        mf = []
        for m in range(2):
            c = A2 + 8*tile + 4*m
            mf.append(f'v_mfma_f32_16x16x32_bf16 {vr(c,4)}, {vr(b,4)}, {hq(2*sg+m)}, {"0" if sg == 0 else vr(c,4)}')
        frags.append(dict(unit=U5 + jj//4, read=rd, nrd=1, mfma=mf, wev=2))
    for sg in range(36):
        for t in range(5):
            add2(t, sg)
            if t == 0: frags[-1]['need'] = [('act', sg, 1)]
    for t0 in (5, 7):
        for sg in range(36):
            for t in range(2): add2(t0 + t, sg)
    groups = [[k] for k in range(18)] + [[18], [19], [20, 21]]
    rest = list(range(22, 36))
    while rest: groups.append(rest[:grp]); rest = rest[grp:]
    groups += [[36, 37, 38, 39], [40, 41, 42, 43, 44]]
    groups.append(list(range(U5, U5 + 12))); u = 12
    while u < 81:
        n = g1 if u < 48 else 4
        groups.append(list(range(U5+u, U5+min(u+n, 81)))); u += n
    S = Stream(a, vm, frags, units, groups, loads, D)
    S.issue_items(2*pre_steps)
    a(f's_mul_i32 s41, s15, {144*1024}\ns_add_u32 s41, s41, {ACT_OFF}')
    a('s_lshl_b32 s16, s14, 11\ns_add_u32 s42, s41, s16')
    a('s_lshl_b32 s16, s13, 11\ns_add_u32 s43, s41, s16\ns_lshr_b32 s16, s12, 1\ns_lshl_b32 s16, s16, 10\ns_add_u32 s43, s43, s16\ns_and_b32 s16, s12, 1\ns_lshl_b32 s16, s16, 3\ns_add_u32 s43, s43, s16')
    a('s_lshl_b32 s45, s13, 7\ns_lshl_b32 s16, s12, 5\ns_add_u32 s45, s45, s16')
    a(f's_lshr_b32 s16, s3, 1\ns_mul_i32 s16, s16, {32*9216}\ns_add_u32 s45, s45, s16')
    a('s_lshl_b32 s47, s3, 10')
    a('s_bitcmp1_b32 s3, 0\ns_cselect_b32 s36, s6, s4\ns_cselect_b32 s37, s7, s5')
    a(f's_mov_b32 s38, {576*9216}\ns_mov_b32 s39, 0x00020000\ns_mov_b32 s34, {2048*576*2}\ns_mov_b32 s35, 0x00020000')
    a(f's_lshl_b32 s16, s15, 1\ns_add_u32 s16, s16, s11\ns_lshl_b32 s16, s16, 2\ns_add_u32 s16, s16, s12\ns_lshl_b32 s16, s16, 7\ns_add_u32 s60, s16, {FL_OFF+2*FLS}')
    for n in range(4): a(f's_mov_b32 s{66+n}, {n*FLS}')
    a('v_lshrrev_b32 v5, 2, v0\nv_lshrrev_b32 v3, 3, v0\nv_and_b32 v3, 2, v3\nv_and_b32 v4, 3, v0\nv_xor_b32 v3, v3, v4\nv_lshlrev_b32 v3, 4, v3')
    a('s_lshl_b32 s16, s3, 4\nv_add_u32 v5, s16, v5\nv_mul_u32_u24 v5, 9216, v5\nv_add_u32 v5, v5, v3')
    t0, t1 = ACC+160, ACC+161
    a(f'v_bfe_u32 v{t0}, v0, 2, 3\nv_lshlrev_b32 v{t0}, 7, v{t0}\nv_and_b32 v{t1}, 3, v0\nv_lshl_add_u32 v{t0}, v{t1}, 3, v{t0}\nv_lshrrev_b32 v{t1}, 5, v0\nv_lshl_add_u32 v{t0}, v{t1}, 11, v{t0}\nv_bfe_u32 v{t1}, v0, 3, 2')
    for t in range(4):
        a(f'v_xor_b32 v{TR1[t]}, {t}, v{t1}\nv_lshl_add_u32 v{TR1[t]}, v{TR1[t]}, 5, v{t0}')
    g2s = """s_bfe_u32 s10, s2, 0x20001
s_and_b32 s11, s2, 1
s_lshl_b32 s11, s11, 3
s_bfe_u32 s16, s2, 0x30003
s_add_u32 s11, s11, s16
s_lshl_b32 s13, s11, 3
s_lshl_b32 s16, s3, 1
s_add_u32 s13, s13, s16""" + f"""
s_mul_i32 s48, s13, {144*1024}
s_mul_i32 s16, s10, {36*1024}
s_add_u32 s48, s48, s16
s_add_u32 s48, s48, {ACT_OFF}
s_lshl_b32 s41, s10, 2
s_add_u32 s41, s41, s12
s_mul_i32 s41, s41, {324*1024}
s_add_u32 s41, s41, s47
s_add_u32 s41, s41, {WDP_OFF}
s_mul_i32 s50, s3, 3072
s_mul_i32 s14, s12, 144
s_lshl_b32 s16, s10, 5
s_add_u32 s15, s14, s16
s_add_u32 s14, s14, 128
s_mul_i32 s62, s13, 18432
s_lshl_b32 s16, s15, 5
s_add_u32 s51, s62, s16
s_add_u32 s51, s51, {X1T_OFF}
s_lshl_b32 s16, s14, 5
s_add_u32 s52, s62, s16
s_add_u32 s52, s52, {X1T_OFF}
s_lshl_b32 s63, s11, 2
s_add_u32 s63, s63, s12
s_lshl_b32 s63, s63, 2
s_mul_i32 s17, s3, 6144"""
    for rel in (1, 2, 3):
        g2s += f'\ns_add_u32 s16, s10, {rel}\ns_and_b32 s16, s16, 3\ns_add_u32 s16, s16, s63\ns_mul_i32 s16, s16, 24576\ns_add_u32 s16, s16, s17\ns_add_u32 s{52+rel}, s16, {EX_OFF+(rel-1)*2048}'
    g2s += f"""
s_add_u32 s16, s63, s3
s_lshl_b32 s16, s16, 12
s_lshl_b32 s18, s10, 10
s_add_u32 s16, s16, s18
s_add_u32 s56, s16, {EXS_OFF}
s_add_u32 s18, s63, s10
s_mul_i32 s57, s18, 24576
s_add_u32 s57, s57, s17
s_add_u32 s57, s57, {EX_OFF}
s_lshl_b32 s58, s18, 12
s_add_u32 s58, s58, {EXS_OFF}
s_lshl_b32 s16, s18, 9
s_lshl_b32 s64, s3, 7
s_add_u32 s16, s16, s64
s_add_u32 s59, s16, {FL_OFF}
s_add_u32 s65, s59, {FLS}
s_lshr_b32 s16, s13, 2
s_lshl_b32 s16, s16, 2
s_add_u32 s16, s16, s10
s_lshl_b32 s16, s16, 10
s_add_u32 s4, s16, {FL_OFF+2*FLS}
s_lshl_b32 s5, s15, 2
s_add_u32 s5, s5, {MOD_OFF+5*576*4}
s_lshl_b32 s6, s14, 2
s_add_u32 s6, s6, {MOD_OFF+5*576*4}"""
    g2s_ops = [('s', x) for x in g2s.split('\n')]
    g2v = f"""v_add_u32 v{V2}, {144*1024}, v1
v_mov_b32 v{RA0}, v1
v_add_u32 v{RA1}, 0x10000, v1
v_add_u32 v{RA2}, 0x20000, v1
v_mov_b32 v{VZ}, 0
v_mov_b32 v{VONE}, 1
v_and_b32 v{VP1}, 7, v0
v_lshl_add_u32 v{VP1}, v{VP1}, 7, s4
v_lshrrev_b32 v{VX}, 5, v0
v_mul_u32_u24 v{VX}, 18432, v{VX}
v_and_b32 v{VG}, 31, v0
v_lshl_add_u32 v{VX}, v{VG}, 4, v{VX}
v_lshrrev_b32 v{VGQ}, 4, v0
v_lshl_add_u32 v{VG}, v{VGQ}, 5, s5
v_lshl_add_u32 v{VGS}, v{VGQ}, 4, s6
v_min_u32 v{VPX}, 2, v0
v_sub_u32 v{VPX}, s10, v{VPX}
v_add_u32 v{VPX}, 3, v{VPX}
v_and_b32 v{VPX}, 3, v{VPX}
v_add_u32 v{VPX}, s63, v{VPX}
v_lshlrev_b32 v{VPX}, 9, v{VPX}
v_add_u32 v{VPX}, s64, v{VPX}
v_min_u32 v{VPOLL}, 3, v0
v_add_u32 v{VPOLL}, 1, v{VPOLL}
v_lshrrev_b32 v{VPOLL}, 2, v{VPOLL}
v_lshl_add_u32 v{VPX}, v{VPOLL}, 17, v{VPX}
v_add_u32 v{VPX}, {FL_OFF}, v{VPX}"""
    g2v_ops = [('a', x) for x in g2v.split('\n')]
    def epi_pair(sa_, sb_, fragoff, tag=None):
        L = []
        for m in range(4):
            for s in (sa_, sb_):
                g, u = acc(s, 0, m), acc(s, 1, m)
                for r in range(4): L.append(('a', f'v_max_f32 v{g+r}, 0, v{g+r}'))
                for r in range(4): L.append(('a', f'v_mul_f32 v{g+r}, v{g+r}, v{u+r}'))
            o = acc(sa_, 1, m); ga_, gb_ = acc(sa_, 0, m), acc(sb_, 0, m)
            L.append(('s', f's_add_u32 s19, s42, {m*144*1024 + fragoff*1024}'))
            L.append(('a', f'v_cvt_pk_bf16_f32 v{o}, v{ga_}, v{ga_+1}')); L.append(('a', f'v_cvt_pk_bf16_f32 v{o+1}, v{ga_+2}, v{ga_+3}'))
            L.append(('a', f'v_cvt_pk_bf16_f32 v{o+2}, v{gb_}, v{gb_+1}')); L.append(('a', f'v_cvt_pk_bf16_f32 v{o+3}, v{gb_+2}, v{gb_+3}'))
            L.append(('v', f'buffer_store_dwordx4 {vr(o,4)}, v1, s[28:31], s19 offen sc1', tag if m == 3 else None))
        return L
    def epi_single(s, tag):
        L = []
        for m in range(4):
            g, u = acc(s, 0, m), acc(s, 1, m)
            for r in range(4): L.append(('a', f'v_max_f32 v{g+r}, 0, v{g+r}'))
            for r in range(4): L.append(('a', f'v_mul_f32 v{g+r}, v{g+r}, v{u+r}'))
            L.append(('s', f's_add_u32 s19, s43, {m*144*1024}'))
            L.append(('a', f'v_cvt_pk_bf16_f32 v{u}, v{g}, v{g+1}')); L.append(('a', f'v_cvt_pk_bf16_f32 v{u+1}, v{g+2}, v{g+3}'))
            L.append(('v', f'buffer_store_dwordx2 {vr(u,2)}, v1, s[28:31], s19 offen sc1', tag if m == 3 else None))
        return L
    def flag(tag, so): return [('w', [tag]), ('v', f'buffer_store_dword v{VONE}, v{VZ}, s[28:31], {so} offen sc1', None)]
    def send_group(t0, so, tag):
        L = []
        for m in range(2):
            x, y = A2 + 8*t0 + 4*m, A2 + 8*(t0+1) + 4*m
            L += [('a', f'v_cvt_pk_bf16_f32 v{x}, v{x}, v{x+1}'), ('a', f'v_cvt_pk_bf16_f32 v{x+1}, v{x+2}, v{x+3}'),
                  ('a', f'v_cvt_pk_bf16_f32 v{x+2}, v{y}, v{y+1}'), ('a', f'v_cvt_pk_bf16_f32 v{x+3}, v{y+2}, v{y+3}'),
                  ('v', f'buffer_store_dwordx4 {vr(x,4)}, v1, s[28:31], {so} offen offset:{1024*m} sc1', tag if m else None)]
        return L
    def send_s():
        x = A2 + 32
        return [('a', f'v_cvt_pk_bf16_f32 v{TMP+k}, v{x+2*k}, v{x+2*k+1}') for k in range(4)] + [('v', f'buffer_store_dwordx4 {vr(TMP,4)}, v1, s[28:31], s56 offen sc1', 'send1')]
    E = {}
    def ev(j, fn): E.setdefault(j, []).append(fn)
    def q(ops): return lambda: S.fillq.extend(ops() if callable(ops) else ops)
    def empty(): assert not S.fillq, (S.j, len(S.fillq))
    mid = (lambda: a(';MID')) if mids is None else (lambda: None)
    for jm in (mids or []): ev(jm, lambda: a(';MID'))
    ev(8, q(g2s_ops))
    ev(144, mid); ev(144, empty)
    def pflag(tag): return flag(tag, 's60') + [('s', f's_add_u32 s60, s60, {FLS}')]
    ev(146, q(lambda: epi_pair(0, 1, 0) + epi_pair(2, 3, 1, 'st0')))
    ev(216, empty); ev(216, mid)
    ev(218, q(lambda: epi_pair(4, 5, 2, 'st1') + g2v_ops + pflag('st0')))
    ev(218 + 18 + ack4, q(lambda: pflag('st1')))
    ev(J4 - 13, empty); ev(J4, mid)
    ev(J4 + 2, q(lambda: epi_pair(0, 1, 3, 'st2')))
    ev(J5, empty); ev(J5, mid)
    ev(J5 + 4, q(lambda: epi_single(2, 'st3') + pflag('st2')))
    ev(J5 + pj2, empty)
    ev(J5 + 4 + 18 + ackd, q(lambda: pflag('st3')))
    ev(J5 + pj3, empty)
    ev(J5 + 180, mid)
    ev(J5 + 183, q(lambda: send_group(0, 's53', None) + send_group(2, 's54', None) + send_s()))
    ev(J5 + 183 + ackd + 16, q(lambda: flag('send1', 's59')))
    ev(J5 + 255, q(lambda: send_group(5, 's55', 'send2')))
    ev(J5 + 255 + ackd, q(lambda: flag('send2', 's65')))
    for j, fns in E.items(): S.events[j] = (lambda fns=fns: [f() for f in fns])
    S.start()
    mid()
    a('.p2align 3')
    S.run()
    assert not S.fillq
    mid()
    a('s_mov_b32 s16, 0')
    a(f'K4_POLL:\nbuffer_load_dword v{VPOLL}, v{VPX}, s[28:31], 0 offen sc1\ns_add_u32 s16, s16, 1\ns_waitcnt vmcnt(0)\nv_cmp_eq_u32 vcc, 0, v{VPOLL}\ns_cmp_ge_u32 s16, 60000\ns_cbranch_scc1 K4_GOT\ns_nop 2\ns_cbranch_vccnz K4_POLL\nK4_GOT:')
    for rel in range(3):
        for m in range(2):
            if rel == 2 and m == 0: a('s_add_u32 s57, s57, 4096')
            a(f'buffer_load_dwordx4 {vr(RX+8*rel+4*m,4)}, v1, s[28:31], s57 offen offset:{(rel%2)*2048+m*1024} sc1')
    a('s_cmp_lg_u32 s3, s10\ns_cbranch_scc1 K4_NOS1')
    for rel in range(3):
        a(f's_add_u32 s16, s10, {rel+1}\ns_and_b32 s16, s16, 3\ns_lshl_b32 s16, s16, 10\ns_add_u32 s16, s16, s58')
        a(f'buffer_load_dwordx4 {vr(RX+24+4*rel,4)}, v1, s[28:31], s16 offen sc1')
    a('K4_NOS1:')
    XR = WF
    a(f'v_and_b32 v2, 15, v0\nv_lshlrev_b32 v3, 3, v2\nv_lshl_add_u32 v3, v{VGQ}, 8, v3\ns_add_u32 s16, s50, {XST}\nv_add_u32 v3, s16, v3\nv_lshl_add_u32 v4, v0, 3, s16')
    for m in range(2):
        for t in range(2):
            a(f'ds_read_b64_tr_b16 {vr(XR+4*m+2*t,2)}, v3 offset:{m*1024+t*128}')
    for m in range(2):
        a(f'ds_read_b64_tr_b16 {vr(XR+8+2*m,2)}, v4 offset:{2048+m*512}')
    a(f'v_mul_u32_u24 v2, 1152, v2\nv_lshl_add_u32 v3, v{VGQ}, 4, v2\nv_lshl_add_u32 v4, v{VGQ}, 3, v2')
    a('s_lshl_b32 s16, s15, 1\ns_add_u32 s45, s62, s16\ns_lshl_b32 s16, s14, 1\ns_add_u32 s46, s62, s16')
    a('s_mov_b32 s17, 0xffff0000\nv_mov_b32 v5, 0x3f80\nv_mov_b32 v6, 0x3f800000')
    a('s_waitcnt lgkmcnt(0)')
    XU = H
    for k in range(12):
        a(f'v_lshlrev_b32 v{XU+2*k}, 16, v{XR+k}\nv_and_b32 v{XU+2*k+1}, s17, v{XR+k}')
    a('s_waitcnt vmcnt(0)')
    mid()
    def accreg(m, e): return A2 + 8*(7 + e//4) + 4*m + e % 4
    for m in range(2):
        for rel in range(3):
            for k in range(4):
                r = RX + 8*rel + 4*m + k
                a(f'v_dot2c_f32_bf16 v{accreg(m,2*k)}, v{r}, v5\nv_dot2c_f32_bf16 v{accreg(m,2*k+1)}, v{r}, v6')
        a('s_nop 2')
        for k in range(4):
            c = accreg(m, 2*k)
            a(f'v_pk_fma_f32 {vr(XU+8*m+2*k,2)}, {vr(c,2)}, {vr(GB+2*k,2)}, {vr(XU+8*m+2*k,2)}')
        for k in range(4):
            a(f'v_cvt_pk_bf16_f32 v{TMP+4*m+k}, v{XU+8*m+2*k}, v{XU+8*m+2*k+1}')
        a(f'buffer_store_dwordx4 {vr(TMP+4*m,4)}, v3, s[32:35], s45 offen')
        if m == 0: a('s_add_u32 s45, s45, 18432')
    a('s_cmp_lg_u32 s3, s10\ns_cbranch_scc1 K4_END')
    x = A2 + 32
    for rel in range(3):
        for k in range(4):
            r = RX + 24 + 4*rel + k
            a(f'v_dot2c_f32_bf16 v{x+2*k}, v{r}, v5\nv_dot2c_f32_bf16 v{x+2*k+1}, v{r}, v6')
    a('s_nop 2')
    for k in range(4):
        a(f'v_pk_fma_f32 {vr(XU+16+2*k,2)}, {vr(x+2*k,2)}, {vr(GB+8+2*(k%2),2)}, {vr(XU+16+2*k,2)}')
    for k in range(4):
        a(f'v_cvt_pk_bf16_f32 v{x+k}, v{XU+16+2*k}, v{XU+16+2*k+1}')
    a(f'buffer_store_dwordx2 {vr(x,2)}, v4, s[32:35], s46 offen\ns_add_u32 s46, s46, 18432\nbuffer_store_dwordx2 {vr(x+2,2)}, v4, s[32:35], s46 offen')
    a('K4_END:\ns_endpgm')
    for n, vaddr in enumerate(slow):
        a(f'K4_SLOW{n}:\ns_mov_b32 s16, 0\nK4_SL{n}:\nbuffer_load_dword v{VPOLL}, v{VP1}, s[28:31], {vaddr} offen sc1\ns_add_u32 s16, s16, 1\ns_waitcnt vmcnt(0)\nv_cmp_eq_u32 vcc, 0, v{VPOLL}\ns_cmp_ge_u32 s16, 60000\ns_cbranch_scc1 K4_RET{n}\ns_nop 2\ns_cbranch_vccnz K4_SL{n}\ns_branch K4_RET{n}')
    a.end_kernel(name, 512, sgpr=70, accum=256)

STAMP_OFF = 0x4000000
def add_stamps(a, flush=False):
    out = []; k = -1; nmid = 0
    lines = a.lines
    for i, ln in enumerate(lines):
        t = ln.strip()
        if t.endswith('_kernel:') and t[0] == 'k':
            k += 1; nmid = 0
            out.append(ln)
            out += ['    s_memrealtime s[70:71]', '    s_memtime s[72:73]', '    s_load_dwordx2 s[100:101], s[0:1], 136', '    v_readfirstlane_b32 s99, v0', '    s_mov_b32 s98, s2', '    s_nop 0']
            for m in range(10): out.append(f'    s_mov_b64 s[{76+2*m}:{77+2*m}], 0')
            continue
        if t.startswith(';MID'):
            if len(t.split()) > 1: nmid = int(t.split()[1])
            out.append(f'    s_memtime s[{76+2*nmid}:{77+2*nmid}]'); nmid += 1
            continue
        if t == 's_endpgm' and k >= 0:
            a.uid += 1; L = f'LST_{a.uid}'
            out += ['    s_mov_b64 exec, -1', '    s_waitcnt vmcnt(0)', '    s_memrealtime s[74:75]', '    s_memtime s[96:97]', '    s_waitcnt lgkmcnt(0)',
                    '    s_cmp_ge_u32 s99, 64', f'    s_cbranch_scc1 {L}',
                    f'    s_lshl_b32 s98, s98, 6', f'    s_add_u32 s98, s98, {STAMP_OFF + k*65536}', '    v_mov_b32 v0, s98',
                    '    v_mov_b32 v2, s70', '    v_mov_b32 v3, s74', '    s_sub_u32 s96, s96, s72', '    v_mov_b32 v4, s96', '    v_mov_b32 v5, 1']
            out += ['    global_store_dwordx4 v0, v[2:5], s[100:101]', '    s_nop 1']
            for q in range(2):
                for j in range(4):
                    m = 4*q + j
                    out += [f'    s_sub_u32 s{76+2*m}, s{76+2*m}, s72', f'    v_mov_b32 v{2+j}, s{76+2*m}']
                out += [f'    global_store_dwordx4 v0, v[2:5], s[100:101] offset:{16+16*q}', '    s_nop 1']
            out += [f'{L}:', ln]
            continue
        out.append(ln)
    a.lines = out
    a.kds = [re.sub(r'next_free_sgpr \d+', 'next_free_sgpr 102', kd) for kd in a.kds]
    a.kernel('blk_kernel')
    a('s_memrealtime s[4:5]\ns_waitcnt lgkmcnt(0)')
    a('L_spin:\ns_memrealtime s[6:7]\ns_waitcnt lgkmcnt(0)\ns_sub_u32 s8, s6, s4\ns_cmp_lt_u32 s8, 8000\ns_cbranch_scc1 L_spin')
    a.lines.append('    s_endpgm')
    a.end_kernel('blk_kernel', 8, 32)
    a.launches = ['; @launch kernel=blk_kernel grid=(1,1,1) block=(64,1,1) lds=0'] + a.launches
    if flush:
        a.kernel('fl_kernel')
        a('s_load_dwordx2 s[4:5], s[0:1], 136\nv_lshlrev_b32 v1, 4, v0\ns_waitcnt lgkmcnt(0)')
        a.srd(8, 4, WS_BYTES)
        a('s_and_b32 s21, s2, 255\ns_lshl_b32 s21, s21, 19\ns_add_u32 s21, s21, 0x8000000\ns_mov_b32 s22, 128')
        a('L_fl:\nbuffer_load_dwordx4 v[8:11], v1, s[8:11], s21 offen\ns_add_u32 s21, s21, 4096\ns_sub_u32 s22, s22, 1\ns_cmp_lg_u32 s22, 0\ns_cbranch_scc1 L_fl\ns_waitcnt vmcnt(0)')
        a.lines.append('    s_endpgm')
        a.end_kernel('fl_kernel', 16, 32)
        a.launches = ['; @launch kernel=fl_kernel grid=(256,1,1) block=(256,1,1) lds=0'] + a.launches


def add_dbg_stamps(a):
    grids = [int(re.search(r'grid=\((\d+)', l).group(1)) for l in a.launches]
    add_stamps(a)
    a.launches = a.launches[1:]
    n = len(grids)
    a.launch('rpt_kernel', 1, 64)
    a.kernel('rpt_kernel')
    a('s_cmp_ge_u32 s2, 1\ns_cbranch_scc1 RPT_END')
    a('s_load_dwordx4 s[4:7], s[0:1], 128\ns_waitcnt lgkmcnt(0)')
    a(f's_add_u32 s6, s6, {STAMP_OFF}\ns_addc_u32 s7, s7, 0')
    for k, g in enumerate(grids):
        a('v_mov_b32 v4, -1\nv_mov_b32 v5, 0')
        for c in range((g + 63)//64):
            a(f'v_add_u32 v1, {c*64}, v0\nv_min_u32 v1, {g-1}, v1\nv_lshlrev_b32 v1, 6, v1\nv_add_u32 v1, {k*65536}, v1')
            a('global_load_dwordx2 v[2:3], v1, s[6:7]\ns_waitcnt vmcnt(0)\nv_min_u32 v4, v4, v2\nv_max_u32 v5, v5, v3')
        a('v_not_b32 v4, v4\nv_mov_b32 v1, 0')
        a(f'global_atomic_umax v1, v4, s[4:5] offset:{8*k}\nglobal_atomic_umax v1, v5, s[4:5] offset:{8*k+4}')
        a(f'global_atomic_umax v1, v4, s[4:5] offset:{8*k-512*n}\nglobal_atomic_umax v1, v5, s[4:5] offset:{8*k+4-512*n}')
    a('RPT_END:')
    a.lines.append('    s_endpgm')
    a.end_kernel('rpt_kernel', 16, 32)

def add_spin_probe(a, k, which):
    grids = [int(re.search(r'grid=\((\d+)', l).group(1)) for l in a.launches]
    add_stamps(a)
    a.launches = a.launches[1:]
    a.launch('rpt_kernel', 1, 64)
    a.kernel('rpt_kernel')
    a('s_cmp_ge_u32 s2, 1\ns_cbranch_scc1 RPT_END')
    a('s_load_dwordx4 s[4:7], s[0:1], 128\ns_waitcnt lgkmcnt(0)')
    a(f's_add_u32 s6, s6, {STAMP_OFF}\ns_addc_u32 s7, s7, 0')
    a('s_memrealtime s[10:11]\ns_waitcnt lgkmcnt(0)')
    g = grids[k]
    a('v_mov_b32 v4, 0\nv_mov_b32 v5, -1')
    for c in range((g + 63)//64):
        a(f'v_add_u32 v1, {c*64}, v0\nv_min_u32 v1, {g-1}, v1\nv_lshlrev_b32 v1, 6, v1\nv_add_u32 v1, {k*65536}, v1')
        a('global_load_dwordx2 v[2:3], v1, s[6:7]\ns_waitcnt vmcnt(0)\nv_sub_u32 v2, s10, v2\nv_sub_u32 v3, s10, v3\nv_max_u32 v4, v4, v2\nv_min_u32 v5, v5, v3')
    r = 4 if which == 0 else 5
    op = 's_max_u32' if which == 0 else 's_min_u32'
    a(f'v_readlane_b32 s12, v{r}, 0')
    for l in range(1, 64):
        a(f'v_readlane_b32 s13, v{r}, {l}\ns_nop 1\n{op} s12, s12, s13')
    a('s_min_u32 s12, s12, 20000')
    a('s_sub_u32 s12, 20000, s12')
    a('RPT_SPIN:\ns_memrealtime s[14:15]\ns_waitcnt lgkmcnt(0)\ns_sub_u32 s16, s14, s10\ns_cmp_lt_u32 s16, s12\ns_cbranch_scc1 RPT_SPIN')
    a('RPT_END:')
    a.lines.append('    s_endpgm')
    a.end_kernel('rpt_kernel', 16, 32)

HEADER = open('adaLN_cond__ssm_conv_s4__glu_gated_reglu__prompt.s.ref').read().split('; Override')[0] if False else ''

def build(upto=5, stamps=False, **kw):
    a = Asm()
    gen_k1(a, **kw.get('k1', {}))
    if upto >= 2: gen_k2(a, **kw.get('k2', {}))
    s4 = kw.get('s4', True)
    fused = kw.get('fused', True)
    if upto >= 3: gen_k3(a, pack=s4, fused=fused)
    if fused: gen_k45(a, **kw.get('k4', {}))
    else:
        gen_k4(a, **kw.get('k4', {}))
        (gen_k5s if s4 else gen_k5)(a, **kw.get('k5', {}))
    a('CODE_END:')
    a('s_nop 0')
    if stamps == 'dbg': add_dbg_stamps(a)
    elif isinstance(stamps, tuple): add_spin_probe(a, *stamps)
    elif stamps: add_stamps(a, flush=True)
    return a.text()

if __name__ == '__main__':
    txt = build()
    open(sys.argv[1], 'w').write(txt)
```

```python
import sys, math, struct, re
from ag import Asm
import gen as G
from gen import f2u, vr, bf16_round, VmTrack, MOD_OFF, KT_OFF, XT_OFF, X1T_OFF, H2F_OFF, ACT_OFF, WDP_OFF, EX_OFF, EXS_OFF, FL_OFF, STAMP_OFF, WS_BYTES

SP_OFF = 0x2600000
ACTS_OFF = 0x1E00000
WS_SPAN = 0x4000000
FLS = 0x20000
F_X1 = FL_OFF + 6*FLS
F_H2 = F_X1 + 256*128
F_SIDE = F_X1 + 512*128
NFLAG_STAGES = 7
SPIN = 60000

def sigma_of(s):
    qq, r = divmod(s, 18)
    if r >= 16: return 32 + 2*qq + (r - 16)
    if r % 4 >= 2: return 8*(r % 4) + 4*qq + r//4
    return 8*qq + 2*(r//4) + r % 4
PERM = [0]*36
for _s in range(36): PERM[sigma_of(_s)] = _s

class Stream:
    def __init__(self, a, vm, frags, units, groups, loads, D, ngran, maxv=2):
        self.a, self.vm, self.frags, self.units, self.D, self.maxv = a, vm, frags, units, D, maxv
        self.group_of = {}
        for g in groups:
            for x in g: self.group_of[x] = g
        self.published = set(); self.last_barrier = -2
        self.last_read = {}
        for j, f in enumerate(frags): self.last_read[f['unit']] = j
        self.loads = list(loads)
        self.loadq = []; self.fillq = []; self.cur_spacing = 4
        self.events = {}; self.j = -1; self.waited_upto = -1
        self.gran = [None]*ngran
        self.nextg = 0
    def gfree(self, g):
        o = self.gran[g]
        return o is None or self.last_barrier > self.last_read[o]
    def alloc(self, uis):
        n = len(self.gran); taken = {}; pos = self.nextg
        for ui in uis:
            k = self.units[ui]['size'] // 4096
            found = None
            for d in range(n):
                g = (pos + d) % n
                if g % k == 0 and all(self.gfree(g+x) and (g+x) not in taken for x in range(k)):
                    found = g; break
            if found is None: return False
            for x in range(k): taken[found+x] = ui
            pos = (found + k) % n
        for g, ui in taken.items():
            self.gran[g] = ui
            self.units[ui]['lds'] = min(self.units[ui].get('lds', 1 << 30), g*4096)
        self.nextg = pos
        return True
    def place(self, ui, lds):
        self.units[ui]['lds'] = lds
        for x in range(self.units[ui]['size'] // 4096): self.gran[lds//4096 + x] = ui
    def emit(self, op):
        if op[0] == 'v': self.vm.issue(op[2] if len(op) > 2 else None)
        if op[0] == 'w':
            w = self.vm.wait_for(op[1])
            if w: self.a(w)
            return
        self.a(op[1])
    def refill(self, forced=False):
        if self.loadq or not self.loads: return
        it = self.loads[0]
        if self.j < it.get('minj', -1):
            assert not forced, ('forced load too early', self.j, it.get('minj'))
            return
        if it.get('units') and not self.alloc(it['units']):
            assert not forced, ('forced load but no LDS', it['units'], self.j)
            return
        self.loads.pop(0)
        self.loadq.extend(it['ops']()); self.cur_spacing = it['spacing']
    def issue_items(self, n):
        for _ in range(n):
            self.refill(True)
            while self.loadq: self.emit(self.loadq.pop(0))
    def force(self, tags):
        while not all(t in self.vm.idx for t in tags):
            self.refill(True); self.emit(self.loadq.pop(0))
    def publish(self, jr, jnow):
        ui = self.frags[jr]['unit']
        if ui in self.published: return
        g = self.group_of[ui]
        tags = [('dma', x) for x in g]
        self.force(tags)
        w = self.vm.wait_for(tags)
        if w: self.a(w)
        self.a('s_barrier'); self.last_barrier = jnow
        self.published.update(g)
    def pre(self, j):
        NF = len(self.frags); D = self.D
        f = self.frags[j]
        if f.get('need'):
            self.force(f['need'])
            w = self.vm.wait_for(f['need'])
            if w: self.a(w)
        for s in f.get('prev', []): self.a(s)
        if j > self.waited_upto:
            upto = min(j + f.get('wev', 1) - 1, NF - 1)
            cnt = sum(self.frags[x]['nrd'] for x in range(upto + 1, min(j + D, NF)))
            self.a(f's_waitcnt lgkmcnt({cnt})')
            self.waited_upto = upto
        if j + D < NF: self.publish(j + D, j)
    def start(self):
        for j in range(self.D):
            self.publish(j, -1)
            for op in self.frags[j]['read'](): self.emit(op)
    def run(self):
        a = self.a; NF = len(self.frags); D = self.D
        nm = 0; next_load = 0
        self.pre(0)
        for j in range(NF):
            self.j = j
            for fn in self.events.get(j, []): fn()
            rd = self.frags[j + D]['read']() if j + D < NF else []
            mf = self.frags[j]['mfma']
            for m, ins in enumerate(mf):
                a(ins); nm += 1
                t = 4
                self.refill()
                if m == len(mf) - 1:
                    for op in rd:
                        self.emit(op); t += 8 if op[0] == 'd' else 4
                    rd = []
                    n0 = len(a.lines)
                    if j + 1 < NF: self.pre(j + 1)
                    t += 4*(len(a.lines) - n0)
                if t == 4 and not rd:
                    if self.fillq and self.fillq[0][0] == 'v':
                        self.emit(self.fillq.pop(0)); continue
                    if self.loadq and self.loadq[0][0] == 'v' and nm >= next_load:
                        op = self.loadq.pop(0); self.emit(op)
                        next_load = max(next_load, nm - 3) + (op[3] if len(op) > 3 else self.cur_spacing)
                        continue
                elif self.loadq and self.loadq[0][0] == 'v' and nm >= next_load + 2 and not rd:
                    op = self.loadq.pop(0); self.emit(op)
                    next_load = max(next_load, nm - 3) + (op[3] if len(op) > 3 else self.cur_spacing)
                    continue
                if rd and rd[0][0] == 'd':
                    self.emit(rd.pop(0)); t += 8
                nval = 0
                while t < 16:
                    cand = None
                    for kinds in (('s', 'w'), ('a',)):
                        for q in (rd, self.loadq, self.fillq):
                            if q and q[0][0] in kinds and not (q[0][0] == 'a' and nval >= self.maxv):
                                cand = q; break
                        if cand is not None: break
                    if cand is None: break
                    op = cand.pop(0); self.emit(op)
                    if op[0] == 'a':
                        t = max(t, 8) + 4; nval += 1
                    else: t += 4
        assert not self.loadq and not self.loads, (len(self.loadq), len(self.loads))

def spin(a, L, vaddr, soff, vdst, sE='s8', sleep=1):
    a(f's_mov_b32 s16, 0\n{L}:\nbuffer_load_dword v{vdst}, v{vaddr}, s[28:31], {soff} offen sc1\ns_add_u32 s16, s16, 1\ns_waitcnt vmcnt(0)')
    a(f'v_cmp_ne_u32 vcc, {sE}, v{vdst}\ns_cmp_ge_u32 s16, {SPIN}\ns_cbranch_scc1 {L}_X\ns_nop 2\ns_cbranch_vccz {L}_X')
    if sleep: a(f's_sleep {sleep}')
    a(f's_branch {L}\n{L}_X:')

RING = 144*1024
XST = RING
NPREF = 7
PREF0 = 11*8192

def prefill_setup(a, vd, t1, t2):
    a(f'v_lshrrev_b32 v{vd}, 3, v0\nv_and_b32 v{t1}, 6, v{vd}\nv_and_b32 v{t2}, 7, v0\nv_xor_b32 v{t1}, v{t1}, v{t2}\nv_lshlrev_b32 v{t1}, 4, v{t1}')
    a(f's_lshl_b32 s16, s3, 3\nv_add_u32 v{vd}, s16, v{vd}\nv_mul_u32_u24 v{vd}, 9216, v{vd}\nv_add_u32 v{vd}, v{vd}, v{t1}')
def prefill_ops(vd):
    L = []
    for k in range(NPREF):
        if k: L.append(f's_add_u32 s44, s44, {32*9216}')
        L.append(f's_add_u32 m0, s46, {PREF0 + k*8192}')
        L.append(f'buffer_load_dwordx4 v{vd}, s[20:23], s44 offen lds')
        L.append(f'buffer_load_dwordx4 v{vd}, s[24:27], s44 offen offset:1024 lds')
    return L

def conv_part(a, mid):
    HB = 4608; CS = 4160; WB = HB + 4*CS
    a('v_and_b32 v3, 15, v0\nv_bfe_u32 v4, v0, 4, 2')
    a('s_lshl_b32 s13, s2, 2\ns_add_u32 s13, s13, s3')
    a(f's_mul_i32 s5, s3, {WB}')
    a('v_mul_u32_u24 v5, 36864, v3\nv_lshl_add_u32 v5, v4, 4, v5')
    a('v_lshlrev_b32 v6, 3, v0\nv_lshlrev_b32 v7, 2, v0')
    a(f's_lshl_b32 s16, s13, 6\ns_add_u32 s16, s16, {XT_OFF}\ns_mul_i32 s17, s13, 1536\ns_add_u32 s17, s17, {KT_OFF}\ns_lshl_b32 s18, s13, 2')
    a('s_waitcnt lgkmcnt(0)')
    mid()
    a('buffer_load_dwordx2 v[8:9], v6, s[28:31], s17 offen')
    a('buffer_load_dwordx2 v[10:11], v7, s[28:31], s17 offen offset:512')
    a('buffer_load_dwordx2 v[12:13], v7, s[28:31], s17 offen offset:768')
    a('buffer_load_dwordx2 v[14:15], v7, s[28:31], s17 offen offset:1024')
    X = 32
    for u in range(8):
        a(f'buffer_load_dwordx4 {vr(X+4*u,4)}, v5, s[28:31], s16 offen')
        if u < 7: a(f's_add_u32 s16, s16, {16*36864}')
    a('s_add_u32 s36, s28, s18\ns_addc_u32 s37, s29, 0')
    a(f's_load_dword s38, s[36:37], {MOD_OFF}\ns_load_dword s39, s[36:37], {MOD_OFF+576*4}\ns_load_dword s40, s[36:37], {MOD_OFF+2*576*4}')
    a('s_sub_u32 s24, s24, 1024\ns_subb_u32 s25, s25, 0')
    a('v_mov_b32 v16, 0\nv_mov_b32 v17, 0')
    a('v_add_u32 v6, s5, v6')
    a('ds_write_b64 v6, v[16:17] offset:4096')
    a(f'v_lshrrev_b32 v18, 2, v3\nv_mul_u32_u24 v18, {CS}, v18\nv_and_b32 v19, 3, v3\nv_lshl_add_u32 v18, v19, 3, v18\nv_add_u32 v18, s5, v18')
    a(f'ds_write_b64 v18, v[16:17] offset:{HB}')
    a('v_add_u32 v20, s5, v1')
    a('v_lshlrev_b32 v21, 5, v0\nv_add_u32 v21, s5, v21')
    a('v_lshlrev_b32 v24, 5, v3\nv_sub_u32 v24, s5, v24\nv_lshlrev_b32 v25, 3, v4\nv_sub_u32 v22, v24, v25\nv_add_u32 v22, 504, v22')
    a('v_lshl_add_u32 v23, v4, 4, v24\nv_add_u32 v23, 480, v23')
    a(f'v_sub_u32 v25, 3, v3\nv_and_b32 v25, 3, v25\nv_mul_u32_u24 v26, {CS+2}, v25\nv_lshl_add_u32 v26, v3, 1, v26\nv_lshl_add_u32 v26, v4, 4, v26\nv_add_u32 v26, s5, v26\nv_add_u32 v26, {HB+2}, v26')
    a('s_mov_b32 s41, 0x01000100\ns_mov_b32 s42, 0x03020302\ns_mov_b32 s43, 0xffff0000')
    prefill_setup(a, 224, 225, 226)
    C0 = HB + 32
    a('s_waitcnt vmcnt(8)')
    mid()
    a(f'ds_write_b64 v6, v[8:9] offset:{C0}')
    a('v_perm_b32 v16, v10, v10, s41\nv_alignbit_b32 v17, v11, v10, 16')
    a(f'ds_write_b64 v6, v[16:17] offset:{C0+512}')
    a('v_perm_b32 v64, v12, v12, s41\nv_mov_b32 v65, v12\nv_perm_b32 v66, v12, v12, s42\nv_perm_b32 v67, v13, v13, s41')
    a(f'ds_write_b128 v20, v[64:67] offset:{C0+1024}')
    a('v_perm_b32 v68, v14, v14, s41\nv_perm_b32 v69, v14, v14, s41\nv_mov_b32 v70, v14\nv_perm_b32 v71, v14, v14, s42')
    a('v_perm_b32 v72, v14, v14, s42\nv_perm_b32 v73, v14, v14, s42\nv_perm_b32 v74, v15, v15, s41\nv_perm_b32 v75, v15, v15, s41')
    a(f'ds_write_b128 v21, v[68:71] offset:{C0+2048}\nds_write_b128 v21, v[72:75] offset:{C0+2048+16}')
    for t in range(4):
        b = 80 + 8*t
        a(f'ds_read_b64 {vr(b+2,2)}, v20 offset:{C0+1024*t-8}\nds_read_b128 {vr(b+4,4)}, v20 offset:{C0+1024*t}')
    a('s_waitcnt lgkmcnt(0)')
    a('v_mov_b32 v28, s39\nv_mov_b32 v30, s38')
    for t in range(4):
        b = 80 + 8*t; o = 112 + 12*(t & 1)
        for j in range(4): a(f'v_alignbit_b32 v{o+j}, v{b+4+j}, v{b+3+j}, 16')
        a(f'ds_write_b128 v20, {vr(o,4)} offset:{C0+CS+1024*t}')
        a(f'v_pk_mov_b32 {vr(o+4,2)}, {vr(b+2,2)}, {vr(b+4,2)} op_sel:[1,0]\nv_pk_mov_b32 {vr(o+6,2)}, {vr(b+4,2)}, {vr(b+6,2)} op_sel:[1,0]')
        a(f'ds_write_b128 v20, {vr(o+4,4)} offset:{C0+2*CS+1024*t}')
        for j in range(4): a(f'v_alignbit_b32 v{o+8+j}, v{b+3+j}, v{b+2+j}, 16')
        a(f'ds_write_b128 v20, {vr(o+8,4)} offset:{C0+3*CS+1024*t}')
    for u in range(8):
        a(f's_waitcnt vmcnt({7-u})')
        t = 64 + 8*(u & 1)
        for j in range(4): a(f'v_and_b32 v{t+j}, s43, v{X+4*u+j}')
        a(f'v_pk_fma_f32 {vr(t,2)}, {vr(t,2)}, v[28:29], v[30:31] op_sel_hi:[1,0,0]\nv_pk_fma_f32 {vr(t+2,2)}, {vr(t+2,2)}, v[28:29], v[30:31] op_sel_hi:[1,0,0]')
        a(f'v_cvt_pk_bf16_f32 v{t+4}, v{t+3}, v{t+2}\nv_cvt_pk_bf16_f32 v{t+5}, v{t+1}, v{t}')
        a(f'ds_write_b64 v22, {vr(t+4,2)} offset:{(7-u)*512}')
    ACC = 64; FR = [96, 160]
    def reads(i):
        f = FR[i & 1]; L = []
        for k in range(8):
            L.append(f'ds_read_b128 {vr(f+32+4*k,4)}, v23 offset:{64*i+512*(7-k)}')
            L.append(f'ds_read_b64 {vr(f+4*k,2)}, v26 offset:{64*i+512*k}')
            L.append(f'ds_read_b64 {vr(f+4*k+2,2)}, v26 offset:{64*i+512*k+8}')
        return L
    for s in reads(0): a(s)
    a('v_lshlrev_b32 v5, 5, v3\nv_lshl_add_u32 v5, v4, 3, v5\nv_add_u32 v5, s5, v5')
    extra = [f'v_lshlrev_b32 v{X+j}, 16, v{X+j}' for j in range(32)]
    extra += f'''v_bfe_u32 v27, v0, 1, 2
v_mul_u32_u24 v27, {WB}, v27
v_lshrrev_b32 v29, 3, v0
v_lshl_add_u32 v27, v29, 5, v27
v_and_b32 v31, 1, v0
v_lshl_add_u32 v27, v31, 4, v27
s_lshl_b32 s16, s3, 10
v_add_u32 v27, s16, v27
v_mul_u32_u24 v29, 18432, v29
v_and_b32 v31, 7, v0
v_lshl_add_u32 v29, v31, 4, v29
s_mul_i32 s17, s3, {32*18432}
s_lshl_b32 s16, s2, 7
s_add_u32 s17, s17, s16
s_add_u32 s17, s17, {X1T_OFF}'''.split('\n')
    extra += f'''s_mul_i32 s45, s3, 5
s_min_u32 s45, s45, 14
s_lshl_b32 s18, s45, 7
s_add_u32 s18, s18, {MOD_OFF+3*576*4}
s_mul_i32 s19, s3, 3072
s_add_u32 s19, s19, {XST}
s_mov_b32 m0, s19
s_nop 0
buffer_load_dwordx4 v1, s[28:31], s18 offen lds
s_add_u32 m0, s19, 1024
s_add_u32 s18, s18, {576*4}
buffer_load_dwordx4 v1, s[28:31], s18 offen lds'''.split('\n')
    extra += prefill_ops(224)
    def epi(u):
        L = [f'v_fma_f32 v{X+4*u+j}, v{ACC+4*u+j}, s40, v{X+4*u+j}' for j in range(4)]
        L.append(f'v_cvt_pk_bf16_f32 v{X+4*u}, v{X+4*u}, v{X+4*u+1}')
        L.append(f'v_cvt_pk_bf16_f32 v{X+4*u+1}, v{X+4*u+2}, v{X+4*u+3}')
        L.append(f'ds_write_b64 v5, {vr(X+4*u,2)} offset:{u*512}')
        return L
    for i in range(8):
        a('s_waitcnt lgkmcnt(0)')
        if i == 0: mid()
        f = FR[i & 1]
        fill = reads(i+1) if i < 7 else []
        for u in range(8):
            for al in range(u+1):
                be = u - al
                c = '0' if (i == 0 and al == 0) else vr(ACC+4*u, 4)
                a(f'v_mfma_f32_16x16x32_bf16 {vr(ACC+4*u,4)}, {vr(f+4*al,4)}, {vr(f+32+4*be,4)}, {c}')
                if i < 7:
                    if fill:
                        a(fill.pop(0))
                        if extra and not extra[0].startswith('buffer'): a(extra.pop(0))
                    elif extra:
                        x = extra.pop(0); a(x)
                        if not x.startswith('buffer') and extra and not extra[0].startswith('buffer'): a(extra.pop(0))
                else:
                    for _ in range(2):
                        if fill: a(fill.pop(0))
            if i == 7 and u >= 2: fill += epi(u - 2)
    assert not extra
    mid()
    for v in (6, 7): fill += epi(v)
    for s in fill: a(s)
    a('s_waitcnt lgkmcnt(0)\ns_barrier')
    for n in range(4): a(f'ds_read_b128 {vr(64+4*n,4)}, v27 offset:{n*256}')
    for n in range(4):
        a(f's_waitcnt lgkmcnt({3-n})')
        a(f'buffer_store_dwordx4 {vr(64+4*n,4)}, v29, s[28:31], s17 offen sc1')
        if n < 3: a(f's_add_u32 s17, s17, {8*18432}')

def ln2_part(a, mid):
    P = 96
    a('s_waitcnt vmcnt(4)')
    a('v_lshl_add_u32 v8, v4, 4, s19')
    for k in range(10):
        a(f'ds_read_b128 {vr(P+4*k,4)}, v8 offset:{64*k}\nds_read_b128 {vr(P+40+4*k,4)}, v8 offset:{1024+64*k}')
    a('v_min_u32 v9, 35, v0\ns_mul_i32 s16, s3, 36\nv_add_u32 v9, s16, v9\nv_lshlrev_b32 v9, 7, v9')
    a(f's_mov_b32 s47, {F_X1}\ns_lshl_b32 s48, s2, 7\ns_add_u32 s49, s48, {F_H2}\ns_add_u32 s48, s48, {F_X1}')
    a('v_mov_b32 v10, 0\nv_mov_b32 v11, s8')
    a(f's_lshl_b32 s50, s45, 10\ns_mul_i32 s51, s2, 18432\ns_add_u32 s51, s51, s50\ns_add_u32 s52, s51, {H2F_OFF}\ns_add_u32 s51, s51, {X1T_OFF}')
    a('v_lshl_add_u32 v12, v0, 3, s50')
    a('v_lshlrev_b32 v13, 2, v3\nv_bfe_u32 v14, v0, 5, 1\nv_lshl_add_u32 v14, v14, 6, v13\ns_lshl_b32 s16, s3, 7\nv_add_u32 v14, s16, v14\nv_add_u32 v13, 20480, v13')
    a('s_waitcnt vmcnt(0) lgkmcnt(0)\ns_barrier')
    a('s_cmp_lg_u32 s3, 0\ns_cbranch_scc1 LN2_NF\nbuffer_store_dword v11, v10, s[28:31], s48 offen sc1\nLN2_NF:')
    mid()
    a('s_cmp_ge_u32 s2, 128\ns_cbranch_scc1 GEMM_START')
    spin(a, 'LN2_POLL', 9, 's47', 15)
    a('s_barrier')
    mid()
    a('s_mov_b32 m0, s50\ns_nop 0')
    for k in range(4): a(f'buffer_load_dwordx4 v1, s[28:31], s51 offen offset:{1024*k} sc1 lds')
    a('s_add_u32 m0, s50, 4096\ns_add_u32 s51, s51, 4096\nv_mov_b32 v48, 0\nv_mov_b32 v49, 0\nv_mov_b32 v50, 0\nv_mov_b32 v51, 0')
    a('s_cmp_ge_u32 s3, 2\ns_cbranch_scc1 LN2_A\nbuffer_load_dwordx4 v1, s[28:31], s51 offen sc1 lds\nLN2_A:')
    a('s_waitcnt vmcnt(0)')
    R = 32; XF = 176
    for q in range(8): a(f'ds_read_b64_tr_b16 {vr(R+2*q,2)}, v12 offset:{512*q}')
    a('s_cbranch_scc1 LN2_B')
    for q in (8, 9): a(f'ds_read_b64_tr_b16 {vr(R+2*q,2)}, v12 offset:{512*q}')
    a('LN2_B:\ns_waitcnt lgkmcnt(0)')
    for k in range(20):
        a(f'v_lshlrev_b32 v{XF+2*k}, 16, v{R+k}\nv_and_b32 v{XF+2*k+1}, s43, v{R+k}')
        x = vr(XF+2*k, 2)
        if k == 0: a(f'v_pk_mul_f32 v[16:17], {x}, {x}')
        elif k == 1: a(f'v_pk_add_f32 v[6:7], {vr(XF,2)}, {x}\nv_pk_fma_f32 v[16:17], {x}, {x}, v[16:17]')
        else: a(f'v_pk_add_f32 v[6:7], v[6:7], {x}\nv_pk_fma_f32 v[16:17], {x}, {x}, v[16:17]')
    a('v_add_f32 v6, v6, v7\nv_add_f32 v16, v16, v17')
    a('v_permlane32_swap_b32 v6, v16\nv_add_f32 v6, v6, v16\nv_mov_b32 v7, v6\nv_permlane16_swap_b32 v6, v7\nv_add_f32 v6, v6, v7')
    a('ds_write_b32 v14, v6 offset:20480')
    a('s_waitcnt lgkmcnt(0)\ns_barrier')
    for w in range(4): a(f'ds_read2_b32 {vr(18+2*w,2)}, v13 offset0:{32*w} offset1:{32*w+16}')
    a('s_waitcnt lgkmcnt(0)')
    a('v_pk_add_f32 v[18:19], v[18:19], v[20:21]\nv_pk_add_f32 v[22:23], v[22:23], v[24:25]\nv_pk_add_f32 v[6:7], v[18:19], v[22:23]')
    a(f'v_mul_f32 v6, {f2u(1/576)}, v6\nv_mul_f32 v7, {f2u(1/576)}, v7')
    a('v_fma_f32 v7, -v6, v6, v7\nv_max_f32 v7, 0, v7')
    bf16_round(a, 7, 7)
    a(f'v_add_f32 v7, {f2u(1e-5)}, v7')
    bf16_round(a, 7, 7)
    a('v_sqrt_f32 v7, v7')
    bf16_round(a, 7, 7)
    a('v_rcp_f32 v7, v7')
    bf16_round(a, 6, 6)
    a('v_mul_f32 v6, v6, v7')
    for ks in range(5):
        if ks == 4: a('s_cmp_ge_u32 s3, 2\ns_cbranch_scc1 LN2_C\ns_add_u32 s52, s52, 4096')
        for k in range(4*ks, 4*ks+4):
            x = vr(XF+2*k, 2)
            a(f'v_pk_fma_f32 {x}, {x}, v[6:7], v[6:7] op_sel:[0,1,0] op_sel_hi:[1,1,0] neg_lo:[0,0,1] neg_hi:[0,0,1]')
        for k in range(4*ks, 4*ks+4):
            x = vr(XF+2*k, 2)
            a(f'v_pk_fma_f32 {x}, {x}, {vr(P+40+2*k,2)}, {vr(P+2*k,2)}')
        for k in range(4*ks, 4*ks+4):
            a(f'v_cvt_pk_bf16_f32 v{R+k}, v{XF+2*k}, v{XF+2*k+1}')
        a(f'buffer_store_dwordx4 {vr(R+4*ks,4)}, v1, s[28:31], s52 offen offset:{1024*(ks%4)} sc1')
    a('LN2_C:')
    mid()
    a('s_waitcnt vmcnt(0)\ns_barrier')
    a('s_cmp_lg_u32 s3, 0\ns_cbranch_scc1 GEMM_START\nbuffer_store_dword v11, v10, s[28:31], s49 offen sc1')

def side_part(a):
    a('s_load_dwordx2 s[36:37], s[0:1], 96')
    a('s_and_b32 s10, s2, 7\ns_lshr_b32 s11, s2, 3\ns_sub_u32 s11, s11, 18\ns_lshl_b32 s11, s11, 2\ns_add_u32 s11, s11, s3')
    a('s_mul_i32 s5, s3, 18432')
    a(f'v_mul_u32_u24 v2, {65536//18+1}, v0\nv_lshrrev_b32 v2, 16, v2\nv_mul_u32_u24 v3, 18, v2\nv_sub_u32 v3, v0, v3\nv_mul_u32_u24 v2, 1152, v2\nv_lshl_add_u32 v2, v3, 4, v2')
    a(f'v_mov_b32 v8, v2\nv_mov_b32 v5, {3*1152+160}\nv_mov_b32 v6, {4*1152+160-288}')
    for n in range(1, 9):
        a(f'v_add_u32 v3, 10, v3\nv_cmp_le_u32 vcc, 18, v3\nv_subrev_u32 v4, 18, v3\nv_cndmask_b32 v7, v5, v6, vcc\nv_cndmask_b32 v3, v3, v4, vcc\nv_add_u32 v{8+n}, v{7+n}, v7')
    def unit_scalars(sn, o):
        a(f's_cmp_ge_u32 s{sn}, 36\ns_cselect_b32 s16, 1, 0\ns_mul_i32 s17, s16, 36\ns_sub_u32 s17, s{sn}, s17\ns_lshl_b32 s18, s10, 1\ns_add_u32 s18, s18, s16')
        a(f's_lshr_b32 s{o+1}, s18, 2\ns_and_b32 s19, s18, 3\ns_mul_i32 s16, s{o+1}, 36\ns_add_u32 s16, s16, s17\ns_mul_i32 s16, s16, {32*1152}\ns_mul_i32 s19, s19, 288\ns_add_u32 s{o}, s16, s19')
        a('s_cmp_ge_u32 s17, 18\ns_cselect_b32 s16, 1, 0\ns_mul_i32 s19, s16, 18\ns_sub_u32 s17, s17, s19')
        a('s_lshr_b32 s12, s17, 2\ns_and_b32 s13, s17, 3')
        a('s_lshl_b32 s14, s16, 3\ns_lshl_b32 s15, s12, 1\ns_add_u32 s14, s14, s15\ns_add_u32 s14, s14, s13')
        a('s_lshl_b32 s15, s16, 2\ns_add_u32 s15, s15, s12\ns_lshl_b32 s19, s13, 3\ns_add_u32 s15, s15, s19\ns_cmp_ge_u32 s13, 2\ns_cselect_b32 s14, s15, s14')
        a('s_lshl_b32 s15, s16, 1\ns_add_u32 s15, s15, s17\ns_add_u32 s15, s15, 16\ns_cmp_ge_u32 s17, 16\ns_cselect_b32 s14, s15, s14')
        a(f's_mul_i32 s18, s18, {324*1024}\ns_add_u32 s18, s18, {WDP_OFF}\ns_mul_i32 s16, s14, 5120\ns_add_u32 s{o+2}, s16, s18\ns_lshl_b32 s16, s14, 11\ns_add_u32 s16, s16, s18\ns_add_u32 s{o+3}, s16, {180*1024}')
    unit_scalars(11, 48)
    a('s_mov_b32 m0, s5')
    a(f's_mov_b32 s38, {4608*1152}\ns_mov_b32 s39, 0x00020000')
    a('s_waitcnt lgkmcnt(0)')
    a('s_sub_u32 s24, s24, 1024\ns_subb_u32 s25, s25, 0')
    def wdp_loads(so):
        for n in range(9):
            a(f'buffer_load_dwordx4 v{8+n}, s[36:39], {so} offen lds\ns_add_u32 m0, m0, 1024')
    def wdp_store(o, ldsoff):
        a(f'v_lshrrev_b32 v5, 2, v0\nv_mul_u32_u24 v5, 288, v5\nv_add_u32 v5, s5, v5\nv_and_b32 v6, 3, v0\nv_lshl_add_u32 v24, v6, 3, v5\nv_lshl_add_u32 v5, v6, 4, v5')
        for rel in range(4):
            a(f's_add_u32 s19, s{o+1}, {rel}\ns_and_b32 s19, s19, 3\ns_lshl_b32 s19, s19, 6\nv_add_u32 v{20+rel}, s19, v5')
        a(f's_add_u32 s17, s{o+3}, {72*1024}\ns_add_u32 s18, s{o+2}, 4096')
        p1, p2 = f's{o+2}', f's{o+3}'
        L = [((1, 0), (p1, 0)), ((1, 1), (p1, 1024)), ((2, 0), (p1, 2048)), ((2, 1), (p1, 3072)), ((3, 0), (p2, 0)), ((3, 1), (p2, 1024)), ((0, 0), ('s17', 0)), ((0, 1), ('s17', 1024))]
        for n, ((rel, t), _) in enumerate(L):
            a(f'ds_read_b64_tr_b16 {vr(32+4*n,2)}, v{20+rel} offset:{ldsoff+8*t}\nds_read_b64_tr_b16 {vr(34+4*n,2)}, v{20+rel} offset:{ldsoff+8*t+16*288}')
            if n == 5: a('s_waitcnt lgkmcnt(8)')
        a(f'ds_read_b64_tr_b16 v[64:65], v24 offset:{ldsoff+256}\nds_read_b64_tr_b16 v[66:67], v24 offset:{ldsoff+256+16*288}')
        for n, (_, (so, off)) in enumerate(L):
            if n >= 2: a(f's_waitcnt lgkmcnt({2*(8-n)})')
            a(f'buffer_store_dwordx4 {vr(32+4*n,4)}, v1, s[28:31], {so} offen offset:{off} sc1')
        a('s_waitcnt lgkmcnt(0)\nbuffer_store_dwordx4 v[64:67], v1, s[28:31], s18 offen sc1')
    wdp_loads('s48')
    a(f'v_mul_u32_u24 v26, {65536//9+1}, v0\nv_lshrrev_b32 v26, 16, v26\nv_mul_u32_u24 v27, 9, v26\nv_sub_u32 v27, v0, v27\nv_mul_u32_u24 v26, 9216, v26\nv_lshl_add_u32 v26, v27, 7, v26')
    a(f's_mul_i32 s56, s11, {14*9216}\ns_mul_i32 s16, s10, 1152\ns_add_u32 s56, s56, s16')
    prefill_setup(a, 28, 29, 30)
    a('s_add_u32 s57, s11, 56')
    unit_scalars(57, 52)
    a('s_waitcnt vmcnt(0)')
    a('s_cmp_ge_u32 s11, 16\ns_cbranch_scc1 SD_S')
    wdp_loads('s52')
    a('s_branch SD_T')
    a('SD_S:')
    a('s_cmp_ge_u32 s11, 52\ns_cbranch_scc1 SD_T')
    a(f's_sub_u32 s58, s11, 16\ns_lshr_b32 s16, s58, 1\ns_mul_i32 s16, s16, {32*9216}\ns_mul_i32 s17, s10, 1152\ns_add_u32 s16, s16, s17\ns_add_u32 s16, s16, 1024')
    a(f's_bitcmp1_b32 s58, 0\ns_cselect_b32 s40, s24, s20\ns_cselect_b32 s41, s25, s21\ns_cselect_b32 s42, s26, s22\ns_cselect_b32 s17, 1024, 0\ns_add_u32 s16, s16, s17\ns_mov_b32 s43, 0x00020000')
    a('v_lshrrev_b32 v31, 3, v0\nv_mul_u32_u24 v31, 9216, v31\nv_and_b32 v30, 7, v0\nv_lshl_add_u32 v31, v30, 4, v31')
    for n in range(4):
        a(f'buffer_load_dwordx4 v31, s[40:43], s16 offen lds\ns_add_u32 m0, m0, 1024\ns_add_u32 s16, s16, {8*9216}')
    a('SD_T:')
    wdp_store(48, 0)
    for c in range(2):
        a(f'buffer_load_dword v{70+2*c}, v26, s[20:23], s56 offen\nbuffer_load_dword v{71+2*c}, v26, s[24:27], s56 offen offset:1024\ns_add_u32 s56, s56, {7*9216}')
    a('s_waitcnt vmcnt(13)')
    a('s_cmp_ge_u32 s11, 16\ns_cbranch_scc1 SD_S2')
    wdp_store(52, 9216)
    a('s_branch SD_P')
    a('SD_S2:')
    a('s_cmp_ge_u32 s11, 52\ns_cbranch_scc1 SD_P')
    a('v_lshrrev_b32 v5, 2, v0\nv_lshlrev_b32 v5, 7, v5\nv_and_b32 v6, 3, v0\nv_lshl_add_u32 v5, v6, 3, v5\nv_add_u32 v5, s5, v5')
    for i in range(4):
        a(f'ds_read_b64_tr_b16 {vr(80+4*i,2)}, v5 offset:{9216+32*i}\nds_read_b64_tr_b16 {vr(82+4*i,2)}, v5 offset:{9216+32*i+2048}')
    a(f's_mul_i32 s16, s10, {4*36*1024}\ns_lshl_b32 s17, s58, 10\ns_add_u32 s16, s16, s17\ns_add_u32 s16, s16, {SP_OFF}')
    for i in range(4):
        a(f's_waitcnt lgkmcnt({6-2*i})\nbuffer_store_dwordx4 {vr(80+4*i,4)}, v1, s[28:31], s16 offen sc1\ns_add_u32 s16, s16, {36*1024}')
    a('SD_P:')
    for s in prefill_ops(28): a(s)
    a(f's_lshl_b32 s16, s10, 4\ns_lshr_b32 s17, s11, 2\ns_add_u32 s16, s16, s17\ns_lshl_b32 s16, s16, 7\ns_add_u32 s16, s16, {F_SIDE}')
    a('v_mov_b32 v10, 0\nv_mov_b32 v11, s8')
    a('s_waitcnt vmcnt(0)\ns_barrier')
    a('s_cmp_lg_u32 s3, 0\ns_cbranch_scc1 GEMM_START\nbuffer_store_dword v11, v10, s[28:31], s16 offen sc1\ns_branch GEMM_START')

def gemm_part(a, mid, D=5, sp0=4.0, spacing=5, grp=3, sp_h=5.5, sp_w=5.5, sp2=6, g1=3, ackd=44, ack4=24, npre=24, pj2=50, pj3=100, pd=30, sp_a=5, sp1=3.0, nsa=14, mids=None, hpre=3):
    H = 8; WF = 40; ACC = 64; NB = 6
    HV = [1, ACC+162, ACC+163, ACC+164]
    A2 = 160; MV = 232
    V2, RA0, RA1, RA2, VX, VG, VGS, VP1, VPX, VZ, VONE, VPOLL, VGQ = range(MV, MV+13)
    RX = 64; GB = RX + 40; TMP = GB + 12
    VPS, VPD, VC = 30, 31, 29
    a('GEMM_START:')
    mid(7)
    a('s_and_b32 s11, s2, 7\ns_bfe_u32 s12, s2, 0x20003\ns_lshr_b32 s10, s2, 5')
    a('s_lshl_b32 s15, s10, 4\ns_lshl_b32 s16, s3, 2\ns_add_u32 s15, s15, s16')
    a(f'v_and_b32 v2, 3, v0\nv_add_u32 v2, s15, v2\nv_lshlrev_b32 v2, 7, v2\ns_mov_b32 s17, {F_H2}')
    a(f's_mul_i32 s40, s15, 18432\ns_add_u32 s40, s40, {H2F_OFF}')
    for m in range(1, 4): a(f'v_add_u32 v{HV[m]}, {m*18432}, v1')
    a('s_mul_i32 s13, s11, 9\ns_lshl_b32 s14, s12, 1\ns_add_u32 s14, s14, s13')
    a(f's_mul_i32 s41, s15, {144*1024}\ns_add_u32 s41, s41, {ACT_OFF}\ns_lshl_b32 s16, s14, 11\ns_add_u32 s42, s41, s16')
    a(f's_lshl_b32 s43, s15, 14\ns_lshl_b32 s16, s11, 2\ns_add_u32 s16, s16, s12\ns_lshl_b32 s18, s16, 10\ns_add_u32 s43, s43, s18\ns_add_u32 s43, s43, {ACTS_OFF}')
    a(f's_lshl_b32 s47, s3, 10\ns_mul_i32 s45, s16, {36*1024}\ns_add_u32 s45, s45, s47\ns_add_u32 s45, s45, {SP_OFF}')
    a(f's_lshl_b32 s16, s15, 1\ns_add_u32 s16, s16, s11\ns_lshl_b32 s16, s16, 2\ns_add_u32 s16, s16, s12\ns_lshl_b32 s16, s16, 7\ns_add_u32 s60, s16, {FL_OFF+2*FLS}')
    for n in range(4): a(f's_mov_b32 s{66+n}, {n*FLS}')
    a('v_lshrrev_b32 v5, 2, v0\nv_lshrrev_b32 v3, 3, v0\nv_and_b32 v3, 2, v3\nv_and_b32 v4, 3, v0\nv_xor_b32 v3, v3, v4\nv_lshlrev_b32 v3, 4, v3')
    a('s_lshl_b32 s16, s3, 4\nv_add_u32 v5, s16, v5\nv_mul_u32_u24 v5, 9216, v5\nv_add_u32 v5, v5, v3')
    TR1 = [3, 4, 6, 7]
    t0, t1 = ACC+160, ACC+161
    a(f'v_bfe_u32 v{t0}, v0, 2, 3\nv_lshlrev_b32 v{t0}, 7, v{t0}\nv_and_b32 v{t1}, 3, v0\nv_lshl_add_u32 v{t0}, v{t1}, 3, v{t0}\nv_lshrrev_b32 v{t1}, 5, v0\nv_lshl_add_u32 v{t0}, v{t1}, 11, v{t0}\nv_add_u32 v{t0}, {PREF0}, v{t0}\nv_bfe_u32 v{t1}, v0, 3, 2')
    for t in range(4):
        a(f'v_xor_b32 v{TR1[t]}, {t}, v{t1}\nv_lshl_add_u32 v{TR1[t]}, v{TR1[t]}, 5, v{t0}')
    a(f's_and_b32 s16, s2, 6\ns_lshr_b32 s18, s12, 1\ns_add_u32 s16, s16, s18\ns_lshl_b32 s16, s16, 4\ns_lshl_b32 s18, s11, 4\nv_mov_b32 v{VPS}, s16\nv_mov_b32 v{VPD}, s18\nv_cmp_lt_u32 vcc, 15, v0\nv_and_b32 v{VC}, 15, v0\nv_min_u32 v{VC}, 13, v{VC}\nv_cndmask_b32 v{VPS}, v{VPS}, v{VPD}, vcc\nv_add_u32 v{VPS}, v{VPS}, v{VC}\nv_lshlrev_b32 v{VPS}, 7, v{VPS}\ns_mov_b32 s61, {F_SIDE}')
    vm = VmTrack()
    def hq(idx): return f'a[{4*idx}:{4*idx+3}]' if idx < 64 else vr(H + 4*(idx-64), 4)
    units = []
    for k in range(18): units.append(dict(ph=1, k=k, size=8192))
    for ph in (2, 3):
        for u in range(9): units.append(dict(ph=ph, k=u, size=8192))
    for u in range(9): units.append(dict(ph=4, k=u, size=4096))
    U5 = len(units)
    for u in range(81): units.append(dict(ph=5, k=u, size=4096))
    def lin_item(ui, sp):
        u = units[ui]; so = 's45' if u['ph'] == 4 else 's41'
        def ops():
            L = []
            if u['k']: L.append(('s', f's_add_u32 {so}, {so}, 4096'))
            L.append(('s', f's_add_u32 m0, s47, {u["lds"]}'))
            L.append(('v', f'buffer_load_dwordx4 v1, s[28:31], {so} offen sc1 lds', ('dma', ui)))
            return L
        return dict(ops=ops, units=[ui], spacing=sp)
    def a_item(k):
        u = units[k]
        return dict(units=[k], spacing=spacing, ops=lambda: [('s', f's_add_u32 s44, s44, {32*9216}'), ('s', f's_add_u32 m0, s46, {u["lds"]}'),
            ('v', 'buffer_load_dwordx4 v2, s[20:23], s44 offen lds', None), ('v', 'buffer_load_dwordx4 v2, s[24:27], s44 offen offset:1024 lds', ('dma', k))])
    def b_item(k):
        u, w = units[18+k], units[27+k]
        d = (128 - 17*32*9216) if k == 0 else 64*9216
        def ops():
            return [('s', f's_add_u32 s44, s44, {d & 0xffffffff}'), ('s', 's_add_u32 s18, s44, 64'), ('s', f's_add_u32 m0, s46, {u["lds"]}'),
                ('v', 'buffer_load_dwordx4 v5, s[20:23], s44 offen lds', None, 2),
                ('s', f's_add_u32 m0, s46, {w["lds"]}'), ('v', 'buffer_load_dwordx4 v5, s[20:23], s18 offen lds', None, 2*sp_h - 2),
                ('v', 'buffer_load_dwordx4 v5, s[24:27], s18 offen offset:1024 lds', ('dma', 27+k), 2),
                ('s', f's_add_u32 m0, s46, {u["lds"]}'), ('v', 'buffer_load_dwordx4 v5, s[24:27], s44 offen offset:1024 lds', ('dma', 18+k), 2*sp_h - 2)]
        return dict(units=[18+k, 27+k], spacing=sp_h, ops=ops)
    def h_item(kk, sp):
        def ops():
            L = []
            if kk and kk % 4 == 0: L.append(('s', 's_add_u32 s40, s40, 4096'))
            for m in range(4):
                L.append(('v', f'buffer_load_dwordx4 {hq(4*kk+m)}, v{HV[m]}, s[28:31], s40 offen offset:{(kk%4)*1024} sc1', ('h', kk, m)))
            return L
        return dict(ops=ops, spacing=sp)
    J4 = 288; J5 = 324
    abase = [None]
    def act_item(sg, sp):
        def ops():
            L = []
            if sg >= 32:
                o = (sg-32)*2048
                if sg == 34: L.append(('s', 's_add_u32 s7, s7, 4096'))
                for t in range(2):
                    L.append(('v', f'buffer_load_dwordx4 {hq(2*sg+t)}, v1, s[28:31], s7 offen offset:{(o+t*1024) % 4096} sc1', ('act', sg, t)))
                return L
            off = PERM[sg]*1024
            if abase[0] is None or not (0 <= off - abase[0] < 4096):
                L.append(('s', f's_add_u32 s49, s48, {off}')); abase[0] = off
            for m in range(2):
                L.append(('v', f'buffer_load_dwordx4 {hq(2*sg+m)}, v{(1, V2)[m]}, s[28:31], s49 offen offset:{off-abase[0]} sc1', ('act', sg, m)))
            return L
        return dict(ops=ops, spacing=sp, minj=J4 + 2*(sg//2) + 2)
    slow = []
    def poll_item(tag, va, so, vd, sp, minj):
        return dict(ops=lambda: [('v', f'buffer_load_dword v{vd}, v{va}, s[28:31], {so} offen sc1', tag)], spacing=sp, minj=minj)
    def check_item(tag, va, so, vd, minj):
        def ops():
            n = len(slow); slow.append((va, so, vd))
            return [('w', [tag]), ('a', f'v_cmp_ne_u32 vcc, s8, v{vd}'), ('a', 'v_nop'), ('s', f's_cbranch_vccnz K4_SLOW{n}\nK4_RET{n}:')]
        return dict(ops=ops, spacing=1, minj=minj)
    def x1_ops():
        return [('s', f's_add_u32 m0, s50, {XST}'), ('v', 'buffer_load_dwordx4 v1, s[28:31], s51 offen sc1 lds', None),
             ('s', f's_add_u32 m0, s50, {XST+1024}'), ('s', 's_add_u32 s51, s51, 18432'), ('v', 'buffer_load_dwordx4 v1, s[28:31], s51 offen sc1 lds', None),
             ('s', f's_add_u32 m0, s50, {XST+2048}'), ('v', f'buffer_load_dwordx4 v{VX}, s[28:31], s52 offen sc1 lds', None),
             ('v', f'buffer_load_dwordx4 {vr(GB,4)}, v{VG}, s[28:31], 0 offen', None), ('v', f'buffer_load_dwordx4 {vr(GB+4,4)}, v{VG}, s[28:31], 0 offen offset:16', None),
             ('v', f'buffer_load_dwordx4 {vr(GB+8,4)}, v{VGS}, s[28:31], 0 offen', ('x1',))]
    loads = []
    for k in range(18):
        if k == 8: loads.append(poll_item('pside', VPS, 's61', VPD, spacing, 0))
        if k == 12: loads.append(check_item('pside', VPS, 's61', VPD, 0))
        if k + 2 >= NPREF and k + 2 < 18: loads.append(a_item(k + 2))
        loads.append(h_item(k, sp0 if k < 6 else spacing))
    for k in range(9): loads.append(b_item(k))
    for ui in range(36, U5): loads.append(lin_item(ui, sp_w))
    nu = [0]
    def wdp(upto, sp):
        while nu[0] < min(upto, 81): loads.append(lin_item(U5 + nu[0], sp)); nu[0] += 1
    def pollcheck(n, jp, jc, between):
        loads.append(poll_item(f'poll{n}', VP1, f's{66+n}', VPOLL, sp_w, jp))
        between()
        loads.append(check_item(f'poll{n}', VP1, f's{66+n}', VPOLL, jc))
    wdp(npre - 8, sp_w)
    pollcheck(0, J4 - 22, J4 - 2, lambda: wdp(npre, sp_w))
    def acts(lo, hi):
        for sg in range(lo, hi):
            sp = sp_a if sg < nsa else sp1
            wdp((5*(sg+1) + D + 11)//4, sp)
            loads.append(act_item(sg, sp))
    acts(0, 8)
    pollcheck(1, 0, 0, lambda: acts(8, 16))
    acts(16, 24)
    wdp(36, sp1)
    pollcheck(2, J5 + pj2, J5 + pj2 + pd, lambda: wdp(44, sp1))
    acts(24, 32)
    pollcheck(3, J5 + pj3, J5 + pj3 + pd, lambda: wdp(54, sp1))
    acts(32, 36)
    wdp(81, sp2)
    loads.append(dict(ops=x1_ops, spacing=sp2))
    areg = {('p1', t): TR1[t] for t in range(4)}
    ab = {k: PREF0 for k in areg}
    def acc(slot, mat, m): return ACC + 32*slot + 16*mat + 4*m
    frags = []
    def mf1(b, slot, mat, kk):
        return [f'v_mfma_f32_16x16x32_bf16 {vr(acc(slot,mat,m),4)}, {vr(b,4)}, {hq(4*kk+m)}, {"0" if kk == 0 else vr(acc(slot,mat,m),4)}' for m in range(4)]
    def add1(unit, key, roff, hs, slot, mat, kk):
        j = len(frags); b = WF + 4*(j % NB)
        def rd():
            L = []; off = units[unit]['lds'] + roff
            if key not in areg:
                areg[('p2', 0)] = 3; areg[('p2', 1)] = 4; ab[('p2', 0)] = 0; ab[('p2', 1)] = 0
                L += [('a', s) for s in ['v_lshrrev_b32 v3, 2, v0', 'v_lshlrev_b32 v3, 6, v3', 'v_and_b32 v4, 3, v0', 'v_lshl_add_u32 v3, v4, 3, v3',
                    'v_bfe_u32 v4, v0, 4, 1', 'v_lshl_add_u32 v3, v4, 5, v3', 'v_xor_b32 v4, 32, v3']]
            r = areg[key]; lo = off - ab[key]
            if lo < 0 or lo + hs > 65535:
                nb = units[unit]['lds'] if off >= 49152 else 0
                L.append(('a', f'v_add_u32 v{r}, {(nb - ab[key]) & 0xffffffff}, v{r}'))
                ab[key] = nb; lo = off - nb
            return L + [('d', f'ds_read_b64_tr_b16 {vr(b,2)}, v{r} offset:{lo}'), ('d', f'ds_read_b64_tr_b16 {vr(b+2,2)}, v{r} offset:{lo+hs}')]
        frags.append(dict(unit=unit, read=rd, nrd=2, mfma=mf1(b, slot, mat, kk), wev=1))
    def lin_rd(unit, idx, b):
        def rd():
            off = units[unit]['lds'] + idx*1024
            return [('d', f'ds_read_b128 {vr(b,4)}, v{(RA0, RA1, RA2)[off >> 16]} offset:{off & 0xffff}')]
        return rd
    for k in range(18):
        for t in range(4):
            for mat in range(2):
                add1(k, ('p1', t), mat*1024, 4096, t, mat, k)
                if t == 0 and mat == 0: frags[-1]['need'] = [('h', k, 3)]
    for ph, slots in ((2, (4, 5)), (3, (0, 1))):
        for k in range(18):
            ui = 18 + (ph-2)*9 + k//2
            for t in range(2):
                for mat in range(2):
                    add1(ui, ('p2', t), mat*1024 + (k & 1)*4096, 2048, slots[t], mat, k)
    for k in range(18):
        for mat in range(2):
            j = len(frags); b = WF + 4*(j % NB); jj = j - J4
            frags.append(dict(unit=36 + jj//4, read=lin_rd(36 + jj//4, jj % 4, b), nrd=1, mfma=mf1(b, 2, mat, k), wev=2))
    assert len(frags) == J5
    def add2(tile, sg):
        j = len(frags); jj = j - J5; b = WF + 4*(j % NB)
        mf = []
        for m in range(2):
            c = A2 + 8*tile + 4*m
            mf.append(f'v_mfma_f32_16x16x32_bf16 {vr(c,4)}, {vr(b,4)}, {hq(2*sg+m)}, {"0" if sg == 0 else vr(c,4)}')
        frags.append(dict(unit=U5 + jj//4, read=lin_rd(U5 + jj//4, jj % 4, b), nrd=1, mfma=mf, wev=2))
    for sg in range(36):
        for t in range(5):
            add2(t, sg)
            if t == 0:
                frags[-1]['need'] = [('act', sg, 1)]
                if sg >= 32:
                    r = H + 8*(sg-32)
                    frags[-1]['prev'] = [f'v_swap_b32 v{r+2}, v{r+4}', f'v_swap_b32 v{r+3}, v{r+5}']
    for t0_ in (5, 7):
        for sg in range(36):
            for t in range(2): add2(t0_ + t, sg)
    groups = [list(range(NPREF))] + [[k] for k in range(NPREF, 18)] + [[18], [19], [20, 21], [22, 23, 24], [25, 26]]
    groups += [[27, 28, 29], [30, 31, 32], [33, 34, 35], [36, 37, 38, 39], [40, 41, 42, 43, 44]]
    groups.append(list(range(U5, U5 + 6))); groups.append(list(range(U5+6, U5 + 12))); u = 12
    while u < 81:
        n = g1 if u < 48 else 4
        groups.append(list(range(U5+u, U5+min(u+n, 81)))); u += n
    S = Stream(a, vm, frags, units, groups, loads, D, RING // 4096)
    for k in range(NPREF):
        S.place(k, PREF0 + k*8192); vm.idx[('dma', k)] = -1
    S.start()
    spin(a, 'H2_POLL', 2, 's17', VPD)
    mid(0)
    S.issue_items(hpre)
    prefill_setup(a, 2, t0, t1)
    g2s = f"""s_bfe_u32 s10, s2, 0x20001
s_and_b32 s11, s2, 1
s_lshl_b32 s11, s11, 3
s_lshr_b32 s16, s2, 5
s_add_u32 s11, s11, s16
s_lshl_b32 s13, s11, 3
s_lshl_b32 s16, s3, 1
s_add_u32 s13, s13, s16
s_mul_i32 s48, s13, {144*1024}
s_mul_i32 s16, s10, {36*1024}
s_add_u32 s48, s48, s16
s_add_u32 s48, s48, {ACT_OFF}
s_lshl_b32 s7, s13, 14
s_lshl_b32 s16, s10, 13
s_add_u32 s7, s7, s16
s_add_u32 s7, s7, {ACTS_OFF}
s_lshl_b32 s41, s10, 2
s_add_u32 s41, s41, s12
s_mul_i32 s41, s41, {324*1024}
s_add_u32 s41, s41, s47
s_add_u32 s41, s41, {WDP_OFF}
s_mul_i32 s50, s3, 3072
s_mul_i32 s14, s12, 144
s_lshl_b32 s16, s10, 5
s_add_u32 s15, s14, s16
s_add_u32 s14, s14, 128
s_mul_i32 s62, s13, 18432
s_lshl_b32 s16, s15, 5
s_add_u32 s51, s62, s16
s_add_u32 s51, s51, {X1T_OFF}
s_lshl_b32 s16, s14, 5
s_add_u32 s52, s62, s16
s_add_u32 s52, s52, {X1T_OFF}
s_lshl_b32 s63, s11, 2
s_add_u32 s63, s63, s12
s_lshl_b32 s63, s63, 2
s_mul_i32 s17, s3, 6144"""
    for rel in (1, 2, 3):
        g2s += f'\ns_add_u32 s16, s10, {rel}\ns_and_b32 s16, s16, 3\ns_add_u32 s16, s16, s63\ns_mul_i32 s16, s16, 24576\ns_add_u32 s16, s16, s17\ns_add_u32 s{52+rel}, s16, {EX_OFF+(rel-1)*2048}'
    g2s += f"""
s_add_u32 s16, s63, s3
s_lshl_b32 s16, s16, 12
s_lshl_b32 s18, s10, 10
s_add_u32 s16, s16, s18
s_add_u32 s56, s16, {EXS_OFF}
s_add_u32 s18, s63, s10
s_mul_i32 s57, s18, 24576
s_add_u32 s57, s57, s17
s_add_u32 s57, s57, {EX_OFF}
s_lshl_b32 s58, s18, 12
s_add_u32 s58, s58, {EXS_OFF}
s_lshl_b32 s16, s18, 9
s_lshl_b32 s64, s3, 7
s_add_u32 s16, s16, s64
s_add_u32 s59, s16, {FL_OFF}
s_add_u32 s65, s59, {FLS}
s_lshr_b32 s16, s13, 2
s_lshl_b32 s16, s16, 2
s_add_u32 s16, s16, s10
s_lshl_b32 s16, s16, 10
s_add_u32 s4, s16, {FL_OFF+2*FLS}
s_lshl_b32 s5, s15, 2
s_add_u32 s5, s5, {MOD_OFF+5*576*4}
s_lshl_b32 s6, s14, 2
s_add_u32 s6, s6, {MOD_OFF+5*576*4}"""
    a(g2s)
    g2v = f"""v_mov_b32 v{VZ}, 0
v_mov_b32 v{VONE}, s8
v_add_u32 v{V2}, {144*1024}, v1
v_mov_b32 v{RA0}, v1
v_add_u32 v{RA1}, 0x10000, v1
v_add_u32 v{RA2}, 0x20000, v1
v_and_b32 v{VP1}, 7, v0
v_lshl_add_u32 v{VP1}, v{VP1}, 7, s4
v_lshrrev_b32 v{VX}, 5, v0
v_mul_u32_u24 v{VX}, 18432, v{VX}
v_and_b32 v{VG}, 31, v0
v_lshl_add_u32 v{VX}, v{VG}, 4, v{VX}
v_lshrrev_b32 v{VGQ}, 4, v0
v_lshl_add_u32 v{VG}, v{VGQ}, 5, s5
v_lshl_add_u32 v{VGS}, v{VGQ}, 4, s6
v_min_u32 v{VPX}, 2, v0
v_sub_u32 v{VPX}, s10, v{VPX}
v_add_u32 v{VPX}, 3, v{VPX}
v_and_b32 v{VPX}, 3, v{VPX}
v_add_u32 v{VPX}, s63, v{VPX}
v_lshlrev_b32 v{VPX}, 9, v{VPX}
v_add_u32 v{VPX}, s64, v{VPX}
v_min_u32 v{VPOLL}, 3, v0
v_add_u32 v{VPOLL}, 1, v{VPOLL}
v_lshrrev_b32 v{VPOLL}, 2, v{VPOLL}
v_lshl_add_u32 v{VPX}, v{VPOLL}, 17, v{VPX}
v_add_u32 v{VPX}, {FL_OFF}, v{VPX}"""
    g2v_ops = [('a', x) for x in g2v.split('\n')]
    def relu_mul(s, m):
        g, u = acc(s, 0, m), acc(s, 1, m)
        return [('a', f'v_max_f32 v{g+r}, 0, v{g+r}') for r in range(4)] + [('a', f'v_mul_f32 v{g+r}, v{g+r}, v{u+r}') for r in range(4)]
    def cvt4(o, x, y):
        return [('a', f'v_cvt_pk_bf16_f32 v{o}, v{x}, v{x+1}'), ('a', f'v_cvt_pk_bf16_f32 v{o+1}, v{x+2}, v{x+3}'),
                ('a', f'v_cvt_pk_bf16_f32 v{o+2}, v{y}, v{y+1}'), ('a', f'v_cvt_pk_bf16_f32 v{o+3}, v{y+2}, v{y+3}')]
    def epi_pair(sa_, sb_, fragoff, tag=None):
        L = []
        for m in range(4):
            o = acc(sa_, 1, m)
            L += relu_mul(sa_, m) + relu_mul(sb_, m) + [('s', f's_add_u32 s19, s42, {m*144*1024 + fragoff*1024}')] + cvt4(o, acc(sa_, 0, m), acc(sb_, 0, m))
            L.append(('v', f'buffer_store_dwordx4 {vr(o,4)}, v1, s[28:31], s19 offen sc1', tag if m == 3 else None))
        return L
    def epi_single(s, tag):
        L = []
        for p in range(2):
            o = acc(s, 1, 2*p)
            L += relu_mul(s, 2*p) + relu_mul(s, 2*p+1) + ([('s', 's_add_u32 s43, s43, 32768')] if p else []) + cvt4(o, acc(s, 0, 2*p), acc(s, 0, 2*p+1))
            L.append(('v', f'buffer_store_dwordx4 {vr(o,4)}, v1, s[28:31], s43 offen sc1', tag if p else None))
        return L
    def flag(tag, so): return [('w', [tag]), ('v', f'buffer_store_dword v{VONE}, v{VZ}, s[28:31], {so} offen sc1', None)]
    def pflag(tag): return flag(tag, 's60') + [('s', f's_add_u32 s60, s60, {FLS}')]
    def send_group(t0_, so, tag):
        L = []
        for m in range(2):
            x, y = A2 + 8*t0_ + 4*m, A2 + 8*(t0_+1) + 4*m
            L += cvt4(x, x, y) + [('v', f'buffer_store_dwordx4 {vr(x,4)}, v1, s[28:31], {so} offen offset:{1024*m} sc1', tag if m else None)]
        return L
    def send_s():
        return cvt4(TMP, A2+32, A2+36) + [('v', f'buffer_store_dwordx4 {vr(TMP,4)}, v1, s[28:31], s56 offen sc1', 'send1')]
    def ev(j, fn): S.events.setdefault(j, []).append(fn)
    def q(ops): return lambda: S.fillq.extend(ops())
    def empty(): assert not S.fillq, (S.j, len(S.fillq))
    for jm in (mids if mids is not None else [144, 216, J4, J5, J5+180]): ev(jm, mid)
    ev(146, q(lambda: epi_pair(0, 1, 0) + epi_pair(2, 3, 1, 'st0')))
    ev(216, empty)
    ev(218, q(lambda: epi_pair(4, 5, 2, 'st1') + g2v_ops + pflag('st0')))
    ev(218 + 18 + ack4, q(lambda: pflag('st1')))
    ev(J4 - 23, empty)
    ev(J4 + 2, q(lambda: epi_pair(0, 1, 3, 'st2')))
    ev(J5, empty)
    ev(J5 + 4, q(lambda: epi_single(2, 'st3') + pflag('st2')))
    ev(J5 + pj2, empty)
    ev(J5 + 4 + 18 + ackd, q(lambda: pflag('st3')))
    ev(J5 + pj3, empty)
    ev(J5 + 183, q(lambda: send_group(0, 's53', None) + send_group(2, 's54', None) + send_s()))
    ev(J5 + 183 + ackd + 16, q(lambda: flag('send1', 's59')))
    ev(J5 + 255, q(lambda: send_group(5, 's55', 'send2')))
    ev(J5 + 255 + ackd, q(lambda: flag('send2', 's65')))
    a('.p2align 3')
    S.run()
    assert not S.fillq
    if mids is None: mid()
    spin(a, 'EX_POLL', VPX, '0', VPOLL, sleep=0)
    for rel in range(3):
        for m in range(2):
            if rel == 2 and m == 0: a('s_add_u32 s57, s57, 4096')
            a(f'buffer_load_dwordx4 {vr(RX+8*rel+4*m,4)}, v1, s[28:31], s57 offen offset:{(rel%2)*2048+m*1024} sc1')
    a('s_cmp_lg_u32 s3, s10\ns_cbranch_scc1 K4_NOS1')
    for rel in range(3):
        a(f's_add_u32 s16, s10, {rel+1}\ns_and_b32 s16, s16, 3\ns_lshl_b32 s16, s16, 10\ns_add_u32 s16, s16, s58')
        a(f'buffer_load_dwordx4 {vr(RX+24+4*rel,4)}, v1, s[28:31], s16 offen sc1')
    a('K4_NOS1:')
    XR = WF
    a(f'v_and_b32 v2, 15, v0\nv_lshlrev_b32 v3, 3, v2\nv_lshl_add_u32 v3, v{VGQ}, 8, v3\ns_add_u32 s16, s50, {XST}\nv_add_u32 v3, s16, v3\nv_lshl_add_u32 v4, v0, 3, s16')
    for m in range(2):
        for t in range(2):
            a(f'ds_read_b64_tr_b16 {vr(XR+4*m+2*t,2)}, v3 offset:{m*1024+t*128}')
    for m in range(2):
        a(f'ds_read_b64_tr_b16 {vr(XR+8+2*m,2)}, v4 offset:{2048+m*512}')
    a(f'v_mul_u32_u24 v2, 1152, v2\nv_lshl_add_u32 v3, v{VGQ}, 4, v2\nv_lshl_add_u32 v4, v{VGQ}, 3, v2')
    a('s_lshl_b32 s16, s15, 1\ns_add_u32 s45, s62, s16\ns_lshl_b32 s16, s14, 1\ns_add_u32 s46, s62, s16')
    a('s_mov_b32 s17, 0xffff0000\nv_mov_b32 v5, 0x3f80\nv_mov_b32 v6, 0x3f800000')
    a('s_waitcnt lgkmcnt(0)')
    XU = H
    for k in range(12):
        a(f'v_lshlrev_b32 v{XU+2*k}, 16, v{XR+k}\nv_and_b32 v{XU+2*k+1}, s17, v{XR+k}')
    a('s_waitcnt vmcnt(0)')
    def accreg(m, e): return A2 + 8*(7 + e//4) + 4*m + e % 4
    for m in range(2):
        for rel in range(3):
            for k in range(4):
                r = RX + 8*rel + 4*m + k
                a(f'v_dot2c_f32_bf16 v{accreg(m,2*k)}, v{r}, v5\nv_dot2c_f32_bf16 v{accreg(m,2*k+1)}, v{r}, v6')
        a('s_nop 2')
        for k in range(4):
            c = accreg(m, 2*k)
            a(f'v_pk_fma_f32 {vr(XU+8*m+2*k,2)}, {vr(c,2)}, {vr(GB+2*k,2)}, {vr(XU+8*m+2*k,2)}')
        for k in range(4):
            a(f'v_cvt_pk_bf16_f32 v{TMP+4*m+k}, v{XU+8*m+2*k}, v{XU+8*m+2*k+1}')
        a(f'buffer_store_dwordx4 {vr(TMP+4*m,4)}, v3, s[32:35], s45 offen')
        if m == 0: a('s_add_u32 s45, s45, 18432')
    a('s_cmp_lg_u32 s3, s10\ns_cbranch_scc1 KB_END')
    x = A2 + 32
    for rel in range(3):
        for k in range(4):
            r = RX + 24 + 4*rel + k
            a(f'v_dot2c_f32_bf16 v{x+2*k}, v{r}, v5\nv_dot2c_f32_bf16 v{x+2*k+1}, v{r}, v6')
    a('s_nop 2')
    for k in range(4):
        a(f'v_pk_fma_f32 {vr(XU+16+2*k,2)}, {vr(x+2*k,2)}, {vr(GB+8+2*(k%2),2)}, {vr(XU+16+2*k,2)}')
    for k in range(4):
        a(f'v_cvt_pk_bf16_f32 v{x+k}, v{XU+16+2*k}, v{XU+16+2*k+1}')
    a(f'buffer_store_dwordx2 {vr(x,2)}, v4, s[32:35], s46 offen\ns_add_u32 s46, s46, 18432\nbuffer_store_dwordx2 {vr(x+2,2)}, v4, s[32:35], s46 offen')
    a('KB_END:\ns_endpgm')
    for n, (va, so, vd) in enumerate(slow):
        a(f'K4_SLOW{n}:')
        spin(a, f'K4_SL{n}', va, so, vd, sleep=0)
        a(f's_branch K4_RET{n}')

def gen_kb(a, midsel='gemm', **kw):
    name = 'k2_kernel'
    a.launch(name, 256, 256, lds=RING + 4*3072)
    a.kernel(name)
    def mk(sel):
        def mid(n=None):
            if sel == midsel or n == 7: a(';MID' + (f' {n}' if n is not None else ''))
        return mid
    a('s_load_dwordx2 s[28:29], s[0:1], 136')
    a('s_load_dwordx2 s[20:21], s[0:1], 80')
    a('s_load_dwordx2 s[24:25], s[0:1], 88')
    a('s_load_dwordx2 s[32:33], s[0:1], 120')
    a('s_cmp_ge_u32 s2, 256\ns_cbranch_scc1 KB_EXIT')
    a('v_lshrrev_b32 v1, 6, v0')
    a('v_readfirstlane_b32 s3, v1')
    a('v_and_b32 v0, 63, v0\nv_lshlrev_b32 v1, 4, v0')
    a(f's_mov_b32 s22, {576*9216}\ns_mov_b32 s23, 0x00020000\ns_mov_b32 s26, {576*9216+1024}\ns_mov_b32 s27, 0x00020000\ns_mov_b32 s30, {WS_SPAN}\ns_mov_b32 s31, 0x00020000')
    a(f's_mov_b32 s34, {2048*576*2}\ns_mov_b32 s35, 0x00020000\ns_mov_b32 s8, 1')
    a('s_and_b32 s11, s2, 7\ns_bfe_u32 s12, s2, 0x20003\ns_mul_i32 s44, s11, 1152\ns_lshl_b32 s12, s12, 8\ns_add_u32 s44, s44, s12\ns_lshl_b32 s46, s3, 11')
    a('s_cmp_lt_u32 s2, 144\ns_cbranch_scc1 KB_CONV')
    side_part(a)
    a('KB_EXIT:\ns_endpgm')
    a('KB_CONV:')
    conv_part(a, mk('conv'))
    ln2_part(a, mk('conv'))
    gemm_part(a, mk('gemm'), **kw)
    a.end_kernel(name, 512, sgpr=70, accum=256)

ROLES = {0: G.ROLES[0], 1: [('ln2wg', 0, 128), ('convonly', 128, 144), ('side', 144, 256)]}

def build(stamps=False, **kw):
    a = Asm()
    G.gen_k1(a, zero_flags=(FL_OFF, NFLAG_STAGES*16), **kw.get('k1', {}))
    gen_kb(a, **kw.get('kb', {}))
    a('CODE_END:')
    a('s_nop 0')
    if isinstance(stamps, tuple): G.add_spin_probe(a, *stamps)
    elif stamps: G.add_stamps(a, flush=True)
    return a.text()

if __name__ == '__main__':
    open(sys.argv[1], 'w').write(build())
```
